```python
import torch

def _softmax(x, axis=-1):
    return torch.softmax(x, dim=axis)
def _gelu(x):
    return torch.nn.functional.gelu(x, approximate="tanh")
def _silu(x):
    return torch.nn.functional.silu(x)
def _sigmoid(x):
    return torch.sigmoid(x)
def _layernorm(x, axis=-1, eps=1e-5):
    m = x.mean(dim=axis, keepdim=True)
    v = x.var(dim=axis, keepdim=True, unbiased=False)
    return (x - m) / torch.sqrt(v + eps)
def _scatter_add(tgt, idx, src, axis=0):
    return tgt.clone().index_add_(axis, idx, src)
def _segment_sum(src, seg, n):
    out = torch.zeros((n,) + src.shape[1:], dtype=src.dtype)
    return out.index_add_(0, seg, src)
def _pad(x, pw):
    flat = tuple(v for pair in reversed(pw) for v in pair)
    return torch.nn.functional.pad(x, flat)

kernel_name = 'interleave_layers__sliding_block_cached__glu_gated_glu__decode'

def setup_inputs():

    _w = (lambda a: (lambda t: t.to(torch.bfloat16) if t.is_floating_point() else t)(torch.as_tensor(a)))
    def _A_setup():
        B, Sq, D = 4, 1, 512
        Hq, Hkv, Sk, Dh = 32, 8, 8192, 128
        assert Hq % Hkv == 0, (Hq, Hkv)
        return {
            "x": _w((lambda *s: torch.randn(*s, dtype=torch.bfloat16) * 0.05)(B, Sq, D)),
            "k_cache": _w((lambda *s: torch.randn(*s, dtype=torch.bfloat16) * 1.6)(B, Hkv, Sk, Dh)),
            "v_cache": _w((lambda *s: torch.randn(*s, dtype=torch.bfloat16) * 1.6)(B, Hkv, Sk, Dh)),
            "wq": _w((lambda *s: torch.randn(*s, dtype=torch.bfloat16) * 1.6)(D, Hq * Dh) * (D ** -0.5)),
            "wo": _w((lambda *s: torch.randn(*s, dtype=torch.bfloat16) * 1.6)(Hq * Dh, D) * ((Hq * Dh) ** -0.5)),
        }
    _A_in = _A_setup()

    def _B_setup():
        B, S, D, F = 4, 1, 512, 1792
        return {
            "x": _w((lambda *s: torch.randn(*s, dtype=torch.bfloat16) * 0.05)(B, S, D)),
            "w_gate": _w((lambda *s: torch.randn(*s, dtype=torch.bfloat16) * 0.05)(D, F)),
            "w_up": _w((lambda *s: torch.randn(*s, dtype=torch.bfloat16) * 0.05)(D, F)),
            "w_down": _w((lambda *s: torch.randn(*s, dtype=torch.bfloat16) * 0.05)(F, D)),
        }
    _B_in = _B_setup()

    return {
        "A_x": _A_in["x"],
        "A_k_cache": _A_in["k_cache"],
        "A_v_cache": _A_in["v_cache"],
        "A_wq": _A_in["wq"],
        "A_wo": _A_in["wo"],
        "B_x": _B_in["x"],
        "B_w_gate": _B_in["w_gate"],
        "B_w_up": _B_in["w_up"],
        "B_w_down": _B_in["w_down"],
    }

def reference(A_x, A_k_cache, A_v_cache, A_wq, A_wo, B_x, B_w_gate, B_w_up, B_w_down):
    def _A_ref(x, k_cache, v_cache, wq, wo):
        B, Sq, D = x.shape
        Hq, Dh = 32, 128
        Hkv, Sk = k_cache.shape[1], k_cache.shape[2]
        W = min(4096, max(256, Sk // 4))
        rep = Hq // Hkv
        q = (lambda x, *d: x.permute(*d))((x @ wq).reshape(B, Sq, Hq, Dh), 0, 2, 1, 3)
        k = (lambda x, n, axis: torch.repeat_interleave(x, n, dim=axis))(k_cache[:, :, Sk - W:, :], rep, axis=1)
        v = (lambda x, n, axis: torch.repeat_interleave(x, n, dim=axis))(v_cache[:, :, Sk - W:, :], rep, axis=1)
        scores = torch.einsum("bhqd,bhkd->bhqk", q, k) * (Dh ** -0.5)
        p = _softmax(scores, axis=-1)
        o = torch.einsum("bhqk,bhkd->bhqd", p, v)
        return (lambda x, *d: x.permute(*d))(o, 0, 2, 1, 3).reshape(B, Sq, Hq * Dh) @ wo

    def _B_ref(x, w_gate, w_up, w_down):
        g = torch.einsum("bsd,df->bsf", x, w_gate)
        u = torch.einsum("bsd,df->bsf", x, w_up)
        h = _sigmoid(g) * u
        return torch.einsum("bsf,fd->bsd", h, w_down)

    x = A_x
    x = x + _A_ref(_layernorm(x, axis=-1), A_k_cache, A_v_cache, A_wq, A_wo)
    x = x + _B_ref(_layernorm(x, axis=-1), B_w_gate, B_w_up, B_w_down)
    x = x + _A_ref(_layernorm(x, axis=-1), A_k_cache, A_v_cache, A_wq, A_wo)
    x = x + _B_ref(_layernorm(x, axis=-1), B_w_gate, B_w_up, B_w_down)
    return x
```

```python
import argparse

KN = "interleave_layers__sliding_block_cached__glu_gated_glu__decode_kernel"

R1 = 0
R2 = 65536
R3 = 131072
PBUF = R3
PSTAT = R3 + 2048
QB = R3 + 4096
XB = 159744
ONES = XB + 1024 + 64
RED = ONES + 1024
FLG = RED + 1024
LDS_TOTAL = 163840
F_WQ, F_WQR, F_XB, F_QB, F_P, F_VR, F_RED, F_GU, F_DN = [16 * i for i in range(9)]
assert FLG + 256 <= LDS_TOTAL, FLG
FLAGS = 0x1000
IT0 = 0x10000
ITS = 0x80000
QM, X3, X5, HM, OS, OM = 0x0, 0x8000, 0x10000, 0x18000, 0x1C000, 0x20000
WS_USED = IT0 + 2 * ITS
DIAG = 0x200000
POLL_LIMIT = 400000

pX, pK, pV, pWQ, pWO, pBX, pWG, pWU, pWD, pOUT, pDBG, pWS = 4, 6, 8, 10, 12, 14, 16, 18, 20, 22, 24, 26
sWAVE, sJ, sS, sB, sT, sXCC, sTAG, sIT = 28, 29, 30, 31, 32, 33, 34, 35
dA, dB, dC, dW, dO = 36, 40, 44, 48, 52
sCNT, sMODE, sT0, sT1, sT2, sT3, sITB, sBJ = 56, 57, 58, 59, 60, 61, 62, 63
sSEQ, sROT, sM0, sM1, sC0, sC1 = 96, 97, 98, 99, 100, 101
LOG2E = 1.4426950408889634


def f2u(x):
    import struct
    return struct.unpack("<I", struct.pack("<f", x))[0]


class Gen:
    def __init__(s, o):
        s.L = []; s.o = o; s.uid = 0
    def e(s, t):
        for l in t.strip("\n").split("\n"):
            l = l.strip()
            if l: s.L.append(l if l.endswith(":") else "    " + l)
    def lab(s, n): s.L.append(n + ":")
    def new(s, p):
        s.uid += 1
        return "L%s_%d" % (p, s.uid)
    def c(s, t): s.L.append("    ; " + t)
    def nop(s, n):
        while n > 0:
            k = min(n, 16); s.e("s_nop %d" % (k - 1)); n -= k
    def stamp(s, n0, n1=None):
        if not s.o.diag: return
        if n1 is None:
            s.e("s_memrealtime s[%d:%d]\ns_waitcnt lgkmcnt(0)" % (64 + 2 * n0, 65 + 2 * n0))
        else:
            a = s.new("st"); b = s.new("st")
            s.e("s_cmp_eq_u32 s%d, 0\ns_cbranch_scc0 %s" % (sIT, a))
            s.e("s_memrealtime s[%d:%d]\ns_branch %s" % (64 + 2 * n0, 65 + 2 * n0, b))
            s.lab(a)
            s.e("s_memrealtime s[%d:%d]" % (64 + 2 * n1, 65 + 2 * n1))
            s.lab(b)
            s.e("s_waitcnt lgkmcnt(0)")
    def text(s): return "\n".join(s.L) + "\n"
    def exec_set(s, lo, hi=0):
        if hi == 0: s.e("s_mov_b64 exec, 0x%x" % lo)
        else: s.e("s_mov_b32 exec_lo, 0x%x\ns_mov_b32 exec_hi, 0x%x" % (lo, hi))
    def exec_all(s): s.e("s_mov_b64 exec, -1")


def srd(g, d, p, off_s, size):
    if off_s is None:
        g.e("s_mov_b32 s%d, s%d\ns_mov_b32 s%d, s%d" % (d, p, d + 1, p + 1))
    else:
        g.e("s_add_u32 s%d, s%d, s%d\ns_addc_u32 s%d, s%d, 0" % (d, p, off_s, d + 1, p + 1))
    g.e("s_mov_b32 s%d, 0x%x\ns_mov_b32 s%d, 0x20000" % (d + 2, size, d + 3))


def bound(g, top):
    g.e("s_add_u32 s%d, s%d, 1\ns_cmp_lt_u32 s%d, 0x%x\ns_cbranch_scc1 %s\ns_branch L_abort" % (sCNT, sCNT, sCNT, POLL_LIMIT, top))


def maxtree(g, regs, tmp, op3="v_max3_u32", op2="v_max_u32"):
    r = list(regs)
    if len(r) == 2:
        g.e("%s v%d, v%d, v%d" % (op2, tmp, r[0], r[1])); return
    g.e("%s v%d, v%d, v%d, v%d" % (op3, tmp, r[0], r[1], r[2])); r = r[3:]
    while r:
        if len(r) == 1:
            g.e("%s v%d, v%d, v%d" % (op2, tmp, tmp, r[0])); r = []
        else:
            g.e("%s v%d, v%d, v%d, v%d" % (op3, tmp, tmp, r[0], r[1])); r = r[2:]


def poll(g, loads, regs, tmp, name, between=None):
    top = g.new("poll_" + name); done = g.new("ok_" + name)
    g.e("s_mov_b32 s%d, 0" % sCNT)
    g.lab(top)
    for l in loads: g.e(l)
    g.e("s_waitcnt vmcnt(0)")
    maxtree(g, regs, tmp)
    g.e("v_cmp_eq_u32 vcc, -1, v%d" % tmp)
    g.e("s_cbranch_vccz %s" % done)
    bound(g, top)
    g.lab(done)


def lstore(g, ins):
    a = g.new("st_sc1"); b = g.new("st_done")
    g.e("s_cmp_eq_u32 s%d, 0\ns_cbranch_scc1 %s" % (sMODE, a))
    for i in ins: g.e(i)
    g.e("s_branch %s" % b)
    g.lab(a)
    for i in ins: g.e(i + " sc1")
    g.lab(b)


def flag_set(g, grp, val, vFL, vtmp):
    g.e("v_mov_b32 v%d, %s" % (vtmp, val))
    g.e("s_mov_b64 exec, 1")
    g.e("ds_write_b32 v%d, v%d offset:%d" % (vFL, vtmp, grp))
    g.e("s_mov_b64 exec, -1")


def flag_wait(g, grp, val, vFB, vt, name):
    top = g.new("fw_" + name); done = g.new("fd_" + name)
    g.e("s_mov_b32 s%d, 0" % sCNT)
    g.lab(top)
    g.e("ds_read_b128 v[%d:%d], v%d offset:%d" % (vt, vt + 3, vFB, grp))
    g.e("s_waitcnt lgkmcnt(0)")
    g.e("v_min3_u32 v%d, v%d, v%d, v%d" % (vt, vt, vt + 1, vt + 2))
    g.e("v_min_u32 v%d, v%d, v%d" % (vt, vt, vt + 3))
    g.e("v_cmp_le_u32 vcc, %s, v%d" % (val, vt))
    g.e("s_cbranch_vccnz %s" % done)
    bound(g, top)
    g.lab(done)


def dma_group(g, srd_q, vregs, n, soff_fn, m0_fn, nt):
    for i in range(n):
        soff_fn(i); m0_fn(i)
        g.e("s_mov_b32 m0, s%d" % sM0)
        g.e("s_nop 0")
        g.e("buffer_load_dwordx4 v%d, s[%d:%d], s%d offen%s lds" % (vregs(i), srd_q, srd_q + 3, sM1, " nt" if nt else ""))


def build(o):
    g = Gen(o); e = g.e
    e("s_cmp_ge_u32 s2, 256\ns_cbranch_scc1 L_end")
    g.stamp(0)
    e("s_load_dwordx16 s[4:19], s[0:1], 0\ns_load_dwordx8 s[20:27], s[0:1], 64")
    e("v_lshlrev_b32 v3, 2, v0\nv_and_b32 v3, 0xfc, v3\nv_add_u32 v3, 0x%x, v3\nv_mov_b32 v4, 0" % FLG)
    e("ds_write_b32 v3, v4")
    e("v_lshrrev_b32 v1, 6, v0\nv_and_b32 v0, 63, v0")
    e("s_and_b32 s%d, s2, 7" % sJ)
    e("v_readfirstlane_b32 s%d, v1" % sWAVE)
    e("s_lshr_b32 s%d, s2, 3\ns_and_b32 s%d, s%d, 3\ns_lshr_b32 s%d, s%d, 2" % (sS, sB, sS, sS, sS))
    e("s_getreg_b32 s%d, hwreg(HW_REG_XCC_ID, 0, 4)" % sXCC)
    e("s_and_b32 s%d, s%d, 3" % (sT, sWAVE))
    e("s_lshl_b32 s%d, s%d, 3\ns_add_u32 s%d, s%d, s%d" % (sBJ, sB, sBJ, sBJ, sJ))
    e("s_mov_b32 s%d, 0\ns_mov_b32 s%d, 0\ns_mov_b32 s%d, 0x%x\ns_mov_b32 s%d, 1" % (sIT, sMODE, sITB, IT0, sSEQ))
    e("s_add_u32 s%d, s%d, s%d\ns_and_b32 s%d, s%d, 3" % (sROT, sB, sJ, sROT, sROT))
    e("s_lshl_b32 s%d, s%d, 7" % (sT0, sB))
    e("v_and_b32 v1, 15, v0\nv_lshrrev_b32 v2, 4, v0")
    e("s_waitcnt lgkmcnt(0)")
    e("s_load_dword s%d, s[%d:%d], s%d" % (sTAG, pWS, pWS + 1, sT0))
    srd(g, dW, pWS, None, WS_USED if not o.diag else DIAG + 256 * 8 * 128)
    e("s_barrier")
    e("s_cmp_ge_u32 s%d, 4\ns_cbranch_scc1 L_W" % sWAVE)
    A_path(g)
    g.lab("L_W")
    W_path(g)
    g.lab("L_abort")
    if o.diag:
        srd(g, dO, pDBG, None, 256)
        e("s_mov_b64 exec, 1\nv_mov_b32 v1, 0xdead\nv_mov_b32 v2, 0\nbuffer_store_dword v1, v2, s[%d:%d], 0 offen" % (dO, dO + 3))
    g.lab("L_fin")
    if o.diag:
        g.stamp(15)
        e("s_waitcnt vmcnt(0) lgkmcnt(0)")
        e("s_mov_b64 exec, 1")
        e("s_lshl_b32 s%d, s2, 3\ns_add_u32 s%d, s%d, s%d\ns_lshl_b32 s%d, s%d, 7\ns_add_u32 s%d, s%d, 0x%x" % (sT0, sT0, sT0, sWAVE, sT0, sT0, sT0, sT0, DIAG))
        e("v_mov_b32 v3, 0")
        for n in range(16):
            e("v_mov_b32 v4, s%d\nv_mov_b32 v5, s%d" % (64 + 2 * n, 65 + 2 * n))
            e("buffer_store_dwordx2 v[4:5], v3, s[%d:%d], s%d offen offset:%d" % (dW, dW + 3, sT0, 8 * n))
            e("s_nop 1")
    g.lab("L_end")
    e("s_endpgm")
    return g


def W_path(g):
    e = g.e; o = g.o
    vXAD, vX0, vX1, vFL, vFB, vXA, vGO, vQO = 3, 4, 5, 6, 7, 8, 9, 10
    vTRB, vTRF = 11, 12
    vT = 13
    XOP = 32
    GU = 64
    if o.prio: e("s_setprio 3")
    e("v_mov_b32 v16, -1\nv_mov_b32 v17, -1\nv_mov_b32 v18, -1\nv_mov_b32 v19, -1")
    c01 = g.new("clr01"); c3 = g.new("clr3"); cd = g.new("clrd")
    e("s_cmp_ge_u32 s%d, 2\ns_cbranch_scc1 %s" % (sT, c01))
    e("s_mul_i32 s%d, s%d, 0x%x\ns_lshl_b32 s%d, s%d, 13\ns_add_u32 s%d, s%d, s%d" % (sT0, sT, ITS, sT1, sBJ, sT0, sT0, sT1))
    e("s_lshl_b32 s%d, s%d, 10\ns_add_u32 s%d, s%d, s%d\ns_add_u32 s%d, s%d, 0x%x" % (sT1, sS, sT0, sT0, sT1, sT0, sT0, IT0 + OM))
    e("v_lshlrev_b32 v%d, 4, v0" % vT)
    e("buffer_store_dwordx4 v[16:19], v%d, s[%d:%d], s%d offen sc1" % (vT, dW, dW + 3, sT0))
    e("s_branch %s" % cd)
    g.lab(c01)
    e("v_bfe_u32 v%d, v0, 3, 1\nv_mul_u32_u24 v%d, 0x%x, v%d" % (vT, vT, ITS, vT))
    e("v_and_b32 v%d, 7, v0\nv_lshl_add_u32 v%d, v%d, 4, v%d" % (vT + 1, vT + 1, vT + 1, vT))
    e("s_cmp_eq_u32 s%d, 3\ns_cbranch_scc1 %s" % (sT, c3))
    e("s_lshl_b32 s%d, s%d, 10\ns_lshl_b32 s%d, s%d, 7\ns_add_u32 s%d, s%d, s%d\ns_add_u32 s%d, s%d, 0x%x" % (sT0, sBJ, sT1, sS, sT0, sT0, sT1, sT0, sT0, IT0 + QM))
    g.exec_set(0xffff)
    e("buffer_store_dwordx4 v[16:19], v%d, s[%d:%d], s%d offen sc1" % (vT + 1, dW, dW + 3, sT0))
    e("s_lshl_b32 s%d, s%d, 9\ns_lshl_b32 s%d, s%d, 6\ns_add_u32 s%d, s%d, s%d\ns_add_u32 s%d, s%d, 0x%x" % (sT0, sBJ, sT1, sS, sT0, sT0, sT1, sT0, sT0, IT0 + HM))
    g.exec_set(0x0f0f)
    e("buffer_store_dwordx4 v[16:19], v%d, s[%d:%d], s%d offen sc1" % (vT + 1, dW, dW + 3, sT0))
    g.exec_all()
    e("s_branch %s" % cd)
    g.lab(c3)
    e("s_lshl_b32 s%d, s%d, 13\ns_lshl_b32 s%d, s%d, 10\ns_add_u32 s%d, s%d, s%d" % (sT0, sB, sT1, sJ, sT0, sT0, sT1))
    e("s_lshl_b32 s%d, s%d, 7\ns_add_u32 s%d, s%d, s%d\ns_add_u32 s%d, s%d, 0x%x" % (sT1, sS, sT0, sT0, sT1, sT0, sT0, IT0 + X3))
    g.exec_set(0xffff)
    e("buffer_store_dwordx4 v[16:19], v%d, s[%d:%d], s%d offen sc1" % (vT + 1, dW, dW + 3, sT0))
    e("s_add_u32 s%d, s%d, 0x%x" % (sT0, sT0, X5 - X3))
    e("buffer_store_dwordx4 v[16:19], v%d, s[%d:%d], s%d offen sc1" % (vT + 1, dW, dW + 3, sT0))
    e("v_and_b32 v%d, 7, v0\nv_lshl_add_u32 v%d, v%d, 5, v%d" % (vT + 2, vT + 2, vT + 2, vT))
    e("s_lshl_b32 s%d, s%d, 8\ns_lshl_b32 s%d, s%d, 2\ns_add_u32 s%d, s%d, s%d\ns_add_u32 s%d, s%d, 0x%x" % (sT0, sBJ, sT1, sS, sT0, sT0, sT1, sT0, sT0, IT0 + OS))
    e("buffer_store_dword v%d, v%d, s[%d:%d], s%d offen sc1" % (16, vT + 2, dW, dW + 3, sT0))
    g.exec_all()
    g.lab(cd)
    e("s_lshl_b32 s%d, s%d, 10" % (sT0, sB))
    srd(g, dO, pX, sT0, 1024)
    e("v_lshlrev_b32 v%d, 4, v1\nv_lshl_add_u32 v%d, v2, 2, v%d" % (vXAD, vXAD, vXAD))
    e("s_lshl_b32 s%d, s%d, 8" % (sT0, sT))
    e("buffer_load_dword v%d, v%d, s[%d:%d], s%d offen" % (20, vXAD, dO, dO + 3, sT0))
    e("s_lshl_b32 s%d, s%d, 10\ns_lshl_b32 s%d, s%d, 7\ns_add_u32 s%d, s%d, s%d" % (sT0, sJ, sT1, sS, sT0, sT0, sT1))
    srd(g, dA, pWQ, sT0, 511 * 8192 + 128)
    vROW, vCH, vE, vO_ = 21, 22, 23, 24
    e("v_lshrrev_b32 v%d, 3, v0\nv_and_b32 v%d, 7, v0" % (vROW, vCH))
    e("v_and_b32 v%d, 1, v2\nv_lshlrev_b32 v%d, 1, v%d" % (vT, vT, vT))
    e("v_xor_b32 v%d, v%d, v%d\nv_lshlrev_b32 v%d, 4, v%d" % (vCH, vCH, vT, vCH, vCH))
    e("v_lshl_add_u32 v%d, v%d, 13, v%d\nv_xor_b32 v%d, 64, v%d" % (vE, vROW, vCH, vO_, vE))
    e("s_lshl_b32 s%d, s%d, 20\ns_lshl_b32 s%d, s%d, 14" % (sM1, sT, sM0, sT))
    for n in range(16):
        e("s_mov_b32 m0, s%d" % sM0)
        e("s_add_u32 s%d, s%d, 1024" % (sM0, sM0))
        e("buffer_load_dwordx4 v%d, s[%d:%d], s%d offen%s lds" % (vE if n % 2 == 0 else vO_, dA, dA + 3, sM1, " nt" if o.ntw else ""))
        e("s_add_u32 s%d, s%d, 0x10000" % (sM1, sM1))
    e("s_lshl_b32 s%d, s%d, 2\ns_add_u32 s%d, s%d, 0x%x" % (sT0, sT, sT0, sT0, FLG))
    e("v_mov_b32 v%d, s%d\nv_mov_b32 v%d, 0x%x" % (vFL, sT0, vFB, FLG))
    e("v_lshlrev_b32 v%d, 1, v0" % vQO)
    e("v_lshlrev_b32 v%d, 4, v1\nv_lshl_add_u32 v%d, v2, 10, v%d" % (vGO, vGO, vGO))
    e("v_lshrrev_b32 v%d, 2, v1\nv_and_b32 v%d, 3, v0" % (vT, vT + 1))
    e("v_lshl_add_u32 v%d, v2, 3, v%d\nv_lshlrev_b32 v%d, 7, v%d" % (vTRB, vT, vTRB, vTRB))
    e("v_lshrrev_b32 v%d, 1, v%d\nv_and_b32 v%d, 1, v2\nv_lshl_or_b32 v%d, v%d, 1, v%d" % (vTRF, vT, vT + 2, vTRF, vT + 2, vTRF))
    e("v_and_b32 v%d, 1, v%d\nv_lshl_add_u32 v%d, v%d, 3, v%d" % (vT + 2, vT + 1, vTRB, vT + 2, vTRB))
    e("v_lshrrev_b32 v%d, 1, v%d\nv_lshl_add_u32 v%d, v%d, 4, v%d" % (vT + 2, vT + 1, vTRB, vT + 2, vTRB))
    e("v_cmp_eq_u32 vcc, 1, v1\nv_mov_b32 v%d, 0x%x\nv_mov_b32 v%d, 0x%x" % (vT, XB, vT + 1, ONES))
    e("v_cndmask_b32 v%d, v%d, v%d, vcc\nv_lshl_add_u32 v%d, v2, 4, v%d" % (vT, vT, vT + 1, vXA, vT))
    e("s_waitcnt vmcnt(16)")
    e("v_lshlrev_b32 v%d, 16, v20\nv_and_b32 v%d, 0xffff0000, v20" % (vX0, vX1))
    e("s_lshl_b32 s%d, s%d, 8\ns_add_u32 s%d, s%d, 0x%x" % (sT0, sT, sT0, sT0, XB))
    e("v_add_u32 v%d, s%d, v%d" % (vXAD, sT0, vXAD))
    e("ds_write_b32 v%d, v20" % vXAD)
    e("v_mov_b32 v%d, 0x3f803f80" % vT)
    e("ds_write_b32 v%d, v%d offset:%d" % (vXAD, vT, ONES - XB))
    flag_set(g, F_XB, "1", vFL, vT + 1)
    e("s_waitcnt vmcnt(0)")
    g.stamp(1)
    flag_set(g, F_WQ, "1", vFL, vT + 1)
    flag_wait(g, F_WQ, "1", vFB, 16, "wq")
    e("v_xor_b32 v%d, s%d, v%d\nv_lshl_add_u32 v%d, v%d, 5, v%d" % (vT, sT, vTRF, vT, vT, vTRB))
    for i in range(16):
        for u in range(2):
            e("ds_read_b64_tr_b16 a[%d:%d], v%d offset:%d" % (4 * i + 2 * u, 4 * i + 2 * u + 1, vT, R1 + i * 4096 + u * 512))
    nf = g.new("noflag")
    e("s_waitcnt lgkmcnt(0)")
    e("s_add_u32 s%d, s%d, 1" % (sTAG, sTAG))
    flag_set(g, F_WQR, "1", vFL, vT + 1)
    e("s_cmp_lg_u32 s%d, 0\ns_cbranch_scc1 %s" % (sT, nf))
    e("s_lshl_b32 s%d, s%d, 6\ns_lshl_b32 s%d, s%d, 3\ns_add_u32 s%d, s%d, s%d\ns_add_u32 s%d, s%d, s%d" % (sT0, sB, sT1, sJ, sT0, sT0, sT1, sT0, sT0, sS))
    e("s_lshl_b32 s%d, s%d, 7\ns_add_u32 s%d, s%d, 0x%x" % (sT0, sT0, sT0, sT0, FLAGS))
    e("v_mov_b32 v16, s%d\nv_mov_b32 v17, s%d\nv_mov_b32 v18, 0" % (sTAG, sXCC))
    e("s_mov_b64 exec, 1")
    e("buffer_store_dwordx2 v[16:17], v18, s[%d:%d], s%d offen sc1" % (dW, dW + 3, sT0))
    g.exec_all()
    g.lab(nf)
    if o.prio: e("s_setprio 0")

    def gemv(wreg, name):
        e("v_lshlrev_b32 v%d, 4, v0\nv_add_u32 v%d, 0x%x, v%d" % (20, 20, XB, 20))
        e("ds_read_b128 v[24:27], v20")
        for i in range(8):
            e("ds_read_b128 v[%d:%d], v%d offset:%d" % (XOP + 4 * i, XOP + 4 * i + 3, vXA, 64 * i))
        e("s_mov_b32 s%d, 0x3f803f80" % sC0)
        e("s_waitcnt lgkmcnt(8)")
        fill = []
        fill.append("v_dot2_f32_bf16 v28, v24, s%d, 0" % sC0)
        fill.append("v_dot2_f32_bf16 v29, v24, v24, 0")
        for r in (25, 26, 27):
            fill.append("v_dot2_f32_bf16 v28, v%d, s%d, v28" % (r, sC0))
            fill.append("v_dot2_f32_bf16 v29, v%d, v%d, v29" % (r, r))
        steps = [fill[0:4], fill[4:8]]
        dpp = ["row_shr:1 row_mask:0xf bank_mask:0xf bound_ctrl:0", "row_shr:2 row_mask:0xf bank_mask:0xf bound_ctrl:0",
               "row_shr:4 row_mask:0xf bank_mask:0xf bound_ctrl:0", "row_shr:8 row_mask:0xf bank_mask:0xf bound_ctrl:0",
               "row_bcast:15 row_mask:0xa bank_mask:0xf", "row_bcast:31 row_mask:0xc bank_mask:0xf"]
        for d in dpp:
            steps.append(["v_add_f32_dpp v28, v28, v28 " + d, "v_add_f32_dpp v29, v29, v29 " + d])
        steps.append(["v_readlane_b32 s%d, v28, 63" % sT2, "v_readlane_b32 s%d, v29, 63" % sT3])
        steps.append(["v_mul_f32 v30, s%d, v21" % sT2, "v_mul_f32 v31, s%d, v21" % sT3])
        steps.append(["v_fma_f32 v31, -v30, v30, v31", "v_add_f32 v31, 0x3727c5ac, v31"])
        steps.append(["v_rsq_f32 v31, v31"])
        e("v_mov_b32 v21, 0x3b000000")
        for i in range(16):
            n = min(i + 7, 15) - i
            e("s_waitcnt lgkmcnt(%d)" % n)
            e("v_mfma_f32_16x16x32_bf16 v[16:19], v[%d:%d], %s, %s" % (XOP + 4 * (i % 8), XOP + 4 * (i % 8) + 3, wreg(i), "0" if i == 0 else "v[16:19]"))
            if i + 8 < 16:
                e("ds_read_b128 v[%d:%d], v%d offset:%d" % (XOP + 4 * (i % 8), XOP + 4 * (i % 8) + 3, vXA, 64 * (i + 8)))
            if i < len(steps):
                for s_ in steps[i]: e(s_)
        g.nop(8)
        e("v_fma_f32 v16, -v30, v17, v16")
        e("v_mul_f32 v16, v16, v31")

    g.lab("L_W_loop")
    flag_wait(g, F_XB, "s%d" % sSEQ, vFB, 16, "xbq")
    gemv(lambda i: "a[%d:%d]" % (4 * i, 4 * i + 3), "q")
    g.nop(2)
    e("v_mov_b32_dpp v18, v16 quad_perm:[1,0,3,2] row_mask:0xf bank_mask:0xf")
    e("s_lshl_b32 s%d, s%d, 10\ns_lshl_b32 s%d, s%d, 7\ns_add_u32 s%d, s%d, s%d" % (sT0, sBJ, sT1, sS, sT0, sT0, sT1))
    e("v_cvt_pk_bf16_f32 v18, v16, v18")
    e("s_lshl_b32 s%d, s%d, 5\ns_add_u32 s%d, s%d, s%d\ns_add_u32 s%d, s%d, s%d" % (sT1, sT, sT0, sT0, sT1, sT0, sT0, sITB))
    e("v_min_u32 v18, -2, v18")
    g.exec_set(0x5555)
    lstore(g, ["buffer_store_dword v18, v%d, s[%d:%d], s%d offen offset:%d" % (vQO, dW, dW + 3, sT0, QM)])
    g.exec_all()
    g.stamp(2, 10)
    w1 = g.new("w1")
    e("s_cmp_lg_u32 s%d, 0\ns_cbranch_scc1 %s" % (sIT, w1))
    top = g.new("rdy"); done = g.new("rdyok")
    e("v_lshlrev_b32 v20, 7, v0")
    e("s_lshl_b32 s%d, s%d, 13\ns_add_u32 s%d, s%d, 0x%x" % (sT0, sB, sT0, sT0, FLAGS))
    e("s_mov_b32 s%d, 0" % sCNT)
    g.lab(top)
    e("buffer_load_dwordx2 v[16:17], v20, s[%d:%d], s%d offen sc1" % (dW, dW + 3, sT0))
    e("s_waitcnt vmcnt(0)")
    e("v_cmp_ne_u32 vcc, s%d, v16" % sTAG)
    e("s_cbranch_vccz %s" % done)
    bound(g, top)
    g.lab(done)
    e("v_cmp_eq_u32 vcc, s%d, v17" % sXCC)
    e("s_lshl_b32 s%d, s%d, 3" % (sT1, sJ))
    g.nop(2)
    e("s_lshr_b64 s[%d:%d], vcc, s%d" % (sM0, sM1, sT1))
    e("s_and_b32 s%d, s%d, 0xff\ns_cmp_eq_u32 s%d, 0xff\ns_cselect_b32 s%d, 1, 0" % (sM0, sM0, sM0, sMODE))
    if o.force_sc1: e("s_mov_b32 s%d, 0" % sMODE)
    nq = g.new("noq")
    e("s_cmp_lg_u32 s%d, 0\ns_cbranch_scc1 %s" % (sT, nq))
    e("v_lshlrev_b32 v20, 4, v0")
    e("s_lshl_b32 s%d, s%d, 10\ns_add_u32 s%d, s%d, 0x%x" % (sT0, sBJ, sT0, sT0, IT0 + QM))
    poll(g, ["buffer_load_dwordx4 v[16:19], v20, s[%d:%d], s%d offen sc1" % (dW, dW + 3, sT0)], [16, 17, 18, 19], 21, "q0")
    e("v_add_u32 v20, 0x%x, v20" % QB)
    e("ds_write_b128 v20, v[16:19]")
    e("s_lshl_b32 s%d, s%d, 1\ns_add_u32 s%d, s%d, 1" % (sT0, sMODE, sT0, sT0))
    e("v_mov_b32 v21, s%d\nv_mov_b32 v22, 0x%x" % (sT0, FLG + F_QB))
    e("s_mov_b64 exec, 1\nds_write_b32 v22, v21\ns_mov_b64 exec, -1")
    g.lab(nq)
    g.stamp(3)
    flag_wait(g, F_WQR, "1", vFB, 16, "wqr")
    e("s_lshl_b32 s%d, s%d, 19\ns_lshl_b32 s%d, s%d, 7\ns_add_u32 s%d, s%d, s%d" % (sT0, sJ, sT1, sS, sT0, sT0, sT1))
    srd(g, dA, pWO, sT0, 511 * 1024 + 128)
    e("v_lshrrev_b32 v21, 3, v0\nv_and_b32 v22, 7, v0")
    e("v_and_b32 v23, 1, v2\nv_lshlrev_b32 v23, 1, v23\nv_xor_b32 v22, v22, v23\nv_lshlrev_b32 v22, 4, v22")
    e("v_lshl_add_u32 v23, v21, 10, v22\nv_xor_b32 v24, 64, v23")
    e("s_add_u32 s%d, s%d, s%d\ns_lshl_b32 s%d, s%d, 1\ns_add_u32 s%d, s%d, s%d\ns_lshl_b32 s%d, s%d, 1" % (sT2, sJ, sT, sT3, sROT, sT2, sT2, sT3, sT2, sT2))
    for n in range(16):
        e("s_add_u32 s%d, s%d, %d\ns_and_b32 s%d, s%d, 15" % (sT3, sT2, n, sT3, sT3))
        e("s_lshl_b32 s%d, s%d, 4\ns_add_u32 s%d, s%d, s%d" % (sM1, sT, sM1, sM1, sT3))
        e("s_lshl_b32 s%d, s%d, 10" % (sM0, sM1))
        e("s_mov_b32 m0, s%d" % sM0)
        e("s_lshl_b32 s%d, s%d, 13" % (sM1, sM1))
        e("buffer_load_dwordx4 v%d, s[%d:%d], s%d offen%s lds" % (23 if n % 2 == 0 else 24, dA, dA + 3, sM1, " nt" if o.ntw else ""))
    g.stamp(4)
    e("s_waitcnt vmcnt(0)")
    e("s_lshl_b32 s%d, s%d, 14" % (sT0, sT))
    for tile in range(4):
        e("v_xor_b32 v20, %d, v%d\nv_lshl_add_u32 v20, v20, 5, v%d\nv_add_u32 v20, s%d, v20" % (tile, vTRF, vTRB, sT0))
        for i in range(4):
            for u in range(2):
                r = 64 + 16 * tile + 4 * i + 2 * u
                e("ds_read_b64_tr_b16 a[%d:%d], v20 offset:%d" % (r, r + 1, R1 + i * 4096 + u * 512))
    e("s_waitcnt lgkmcnt(0)")
    g.lab(w1)
    e("v_and_b32 v20, 7, v0\nv_lshlrev_b32 v20, 10, v20\nv_lshl_add_u32 v20, v2, 4, v20")
    e("v_and_b32 v21, 1, v2\nv_lshlrev_b32 v21, 4, v21")
    e("s_lshl_b32 s%d, s%d, 13\ns_lshl_b32 s%d, s%d, 8\ns_add_u32 s%d, s%d, s%d\ns_add_u32 s%d, s%d, s%d\ns_add_u32 s%d, s%d, 0x%x" % (sT0, sBJ, sT1, sT, sT0, sT0, sT1, sT0, sT0, sITB, sT0, sT0, OM))
    e("s_lshl_b32 s%d, s%d, 8\ns_lshl_b32 s%d, s%d, 6\ns_add_u32 s%d, s%d, s%d\ns_add_u32 s%d, s%d, s%d\ns_add_u32 s%d, s%d, 0x%x" % (sT1, sBJ, sT2, sT, sT1, sT1, sT2, sT1, sT1, sITB, sT1, sT1, OS))
    loads = ["buffer_load_dwordx4 v[%d:%d], v20, s[%d:%d], s%d offen offset:%d sc1" % (32 + 4 * i, 35 + 4 * i, dW, dW + 3, sT0, 64 * i) for i in range(4)]
    loads += ["buffer_load_dwordx4 v[48:51], v21, s[%d:%d], s%d offen sc1" % (dW, dW + 3, sT1),
              "buffer_load_dwordx4 v[52:55], v21, s[%d:%d], s%d offen offset:32 sc1" % (dW, dW + 3, sT1)]
    poll(g, loads, list(range(32, 56)), 22, "o")
    g.stamp(5, 11)
    fill = [
        ["v_max3_f32 v22, v48, v49, v50", "v_max_f32 v22, v22, v51"],
        ["v_mov_b32 v23, v22", "s_nop 1", "v_permlane16_swap_b32 v23, v22"],
        ["v_max_f32 v22, v22, v23"],
        ["v_sub_f32 v48, v48, v22", "v_sub_f32 v49, v49, v22", "v_sub_f32 v50, v50, v22"],
        ["v_sub_f32 v51, v51, v22", "v_exp_f32 v48, v48", "v_exp_f32 v49, v49"],
        ["v_exp_f32 v50, v50", "v_exp_f32 v51, v51"],
        ["v_mul_f32 v23, v48, v52", "v_fma_f32 v23, v49, v53, v23"],
        ["v_fma_f32 v23, v50, v54, v23", "v_fma_f32 v23, v51, v55, v23"],
        ["v_mov_b32 v24, v23", "s_nop 1", "v_permlane16_swap_b32 v24, v23"],
        ["v_add_f32 v23, v23, v24"],
        ["v_rcp_f32 v23, v23", "s_nop 0"],
        ["v_mul_f32 v48, v48, v23", "v_mul_f32 v49, v49, v23"],
        ["v_mul_f32 v50, v50, v23", "v_mul_f32 v51, v51, v23"],
    ]
    k = 0
    for i in range(4):
        for tile in range(4):
            r = 64 + 16 * tile + 4 * i
            acc = {0: 16, 1: 28, 2: 56, 3: 60}[tile]
            e("v_mfma_f32_16x16x32_bf16 v[%d:%d], v[%d:%d], a[%d:%d], %s" % (acc, acc + 3, 32 + 4 * i, 35 + 4 * i, r, r + 3, "0" if i == 0 else "v[%d:%d]" % (acc, acc + 3)))
            if k < len(fill):
                for s_ in fill[k]: e(s_)
            k += 1
    g.nop(8)
    accs = [16, 28, 56, 60]
    for tile in range(4):
        a = accs[tile]
        e("v_mul_f32 v%d, v%d, v48\nv_fma_f32 v%d, v%d, v49, v%d\nv_fma_f32 v%d, v%d, v50, v%d\nv_fma_f32 v%d, v%d, v51, v%d" % (a, a, a, a + 1, a, a, a + 2, a, a, a + 3, a))
    g.nop(1)
    e("v_permlane16_swap_b32 v16, v28\nv_permlane16_swap_b32 v56, v60")
    e("v_add_f32 v16, v16, v28\nv_add_f32 v56, v56, v60")
    e("s_mov_b32 s%d, 0\ns_mov_b32 s%d, -1" % (sM0, sM1))
    e("v_cndmask_b32 v16, v16, v56, s[%d:%d]" % (sM0, sM1))
    e("s_lshl_b32 s%d, s%d, 2\ns_add_u32 s%d, s%d, 0x%x" % (sT0, sT, sT0, sT0, RED))
    e("v_lshlrev_b32 v20, 4, v0\nv_add_u32 v20, s%d, v20" % sT0)
    e("ds_write_b32 v20, v16")
    e("s_add_u32 s%d, s%d, 1" % (sT0, sIT))
    flag_set(g, F_RED, "s%d" % sT0, vFL, 21)
    g.stamp(6)
    np_ = g.new("nopub")
    e("s_cmp_lg_u32 s%d, 0\ns_cbranch_scc1 %s" % (sT, np_))
    flag_wait(g, F_RED, "s%d" % sT0, vFB, 16, "red")
    e("v_lshlrev_b32 v20, 5, v0\nv_and_b32 v20, 0x3ff, v20\nv_add_u32 v20, 0x%x, v20" % RED)
    e("ds_read_b128 v[16:19], v20\nds_read_b128 v[24:27], v20 offset:16")
    e("s_lshl_b32 s%d, s%d, 13\ns_lshl_b32 s%d, s%d, 10\ns_add_u32 s%d, s%d, s%d" % (sT0, sB, sT1, sJ, sT0, sT0, sT1))
    e("s_lshl_b32 s%d, s%d, 7\ns_add_u32 s%d, s%d, s%d\ns_add_u32 s%d, s%d, s%d\ns_add_u32 s%d, s%d, 0x%x" % (sT1, sS, sT0, sT0, sT1, sT0, sT0, sITB, sT0, sT0, X3))
    e("v_lshlrev_b32 v21, 2, v0")
    e("s_waitcnt lgkmcnt(0)")
    e("v_add_f32 v16, v16, v17\nv_add_f32 v24, v24, v25\nv_add_f32 v18, v18, v19\nv_add_f32 v26, v26, v27")
    e("v_add_f32 v16, v16, v18\nv_add_f32 v24, v24, v26")
    e("v_cvt_pk_bf16_f32 v16, v16, v24\nv_min_u32 v16, -2, v16")
    e("s_mov_b32 exec_lo, -1\ns_mov_b32 exec_hi, 0")
    e("buffer_store_dword v16, v21, s[%d:%d], s%d offen sc1" % (dW, dW + 3, sT0))
    g.exec_all()
    g.lab(np_)

    def gather(region, name):
        e("s_lshl_b32 s%d, s%d, 13\ns_lshl_b32 s%d, s%d, 8\ns_add_u32 s%d, s%d, s%d\ns_add_u32 s%d, s%d, s%d\ns_add_u32 s%d, s%d, 0x%x" % (sT0, sB, sT1, sT, sT0, sT0, sT1, sT0, sT0, sITB, sT0, sT0, region))
        e("s_add_u32 s%d, s%d, 4096" % (sT1, sT0))
        poll(g, ["buffer_load_dwordx4 v[32:35], v%d, s[%d:%d], s%d offen sc1" % (vGO, dW, dW + 3, sT0),
                 "buffer_load_dwordx4 v[36:39], v%d, s[%d:%d], s%d offen sc1" % (vGO, dW, dW + 3, sT1)], list(range(32, 40)), 22, name)
        e("s_mov_b32 s%d, 0x3f80\ns_mov_b32 s%d, 0x3f800000" % (sC0, sC1))
        for k_ in range(4):
            e("v_dot2_f32_bf16 v%d, v%d, s%d, 0\nv_dot2_f32_bf16 v%d, v%d, s%d, 0" % (40 + 2 * k_, 32 + k_, sC0, 41 + 2 * k_, 32 + k_, sC1))
        for k_ in range(4):
            e("v_dot2_f32_bf16 v%d, v%d, s%d, v%d\nv_dot2_f32_bf16 v%d, v%d, s%d, v%d" % (40 + 2 * k_, 36 + k_, sC0, 40 + 2 * k_, 41 + 2 * k_, 36 + k_, sC1, 41 + 2 * k_))
        g.nop(1)
        for i in range(4): e("v_permlane32_swap_b32 v%d, v%d" % (40 + i, 44 + i))
        for i in range(4): e("v_add_f32 v%d, v%d, v%d" % (40 + i, 40 + i, 44 + i))
        g.nop(1)
        e("v_permlane16_swap_b32 v40, v42\nv_permlane16_swap_b32 v41, v43")
        e("v_add_f32 v40, v40, v42\nv_add_f32 v41, v41, v43")
        e("v_cvt_pk_bf16_f32 v22, v40, v41")
        e("v_dot2_f32_bf16 v%d, v22, s%d, v%d\nv_dot2_f32_bf16 v%d, v22, s%d, v%d" % (vX0, sC0, vX0, vX1, sC1, vX1))
        g.nop(3)
        e("v_cvt_pk_bf16_f32 v22, v%d, v%d" % (vX0, vX1))
        e("v_lshlrev_b32 v%d, 16, v22\nv_and_b32 v%d, 0xffff0000, v22" % (vX0, vX1))

    gather(X3, "x3")
    e("ds_write_b32 v%d, v22" % vXAD)
    e("s_add_u32 s%d, s%d, 1" % (sSEQ, sSEQ))
    flag_set(g, F_XB, "s%d" % sSEQ, vFL, 21)
    g.stamp(7, 12)
    ng = g.new("nog"); w2 = g.new("w2")
    e("s_cmp_eq_u32 s%d, 7\ns_cbranch_scc1 %s" % (sS, ng))
    e("s_cmp_lg_u32 s%d, 0\ns_cbranch_scc1 %s" % (sIT, w2))
    flag_wait(g, F_GU, "1", vFB, 16, "gu")
    e("v_lshrrev_b32 v20, 2, v1\nv_and_b32 v21, 3, v0\nv_lshl_add_u32 v20, v2, 3, v20\nv_lshlrev_b32 v20, 6, v20")
    e("v_lshrrev_b32 v22, 1, v21\nv_lshl_add_u32 v20, v22, 15, v20\nv_lshlrev_b32 v22, 1, v22")
    e("v_and_b32 v23, 1, v2\nv_xor_b32 v22, v22, v23\nv_xor_b32 v22, s%d, v22\nv_lshl_add_u32 v20, v22, 4, v20" % sT)
    e("v_and_b32 v21, 1, v21\nv_lshl_add_u32 v20, v21, 3, v20\nv_add_u32 v20, 0x%x, v20" % R2)
    for i in range(16):
        for u in range(2):
            r = GU + 4 * i + 2 * u
            e("ds_read_b64_tr_b16 v[%d:%d], v20 offset:%d" % (r, r + 1, i * 2048 + u * 256))
    e("s_waitcnt lgkmcnt(0)")
    g.lab(w2)
    flag_wait(g, F_XB, "s%d" % sSEQ, vFB, 16, "xbg")
    gemv(lambda i: "v[%d:%d]" % (GU + 4 * i, GU + 4 * i + 3), "g")
    g.nop(2)
    e("v_mov_b32_dpp v17, v16 row_shl:8 row_mask:0xf bank_mask:0xf")
    e("v_mul_f32 v16, 0x%x, v16" % f2u(-LOG2E))
    e("v_exp_f32 v16, v16\ns_nop 0\nv_add_f32 v16, 1.0, v16\nv_rcp_f32 v16, v16\ns_nop 0\nv_mul_f32 v16, v16, v17")
    g.nop(2)
    e("v_mov_b32_dpp v18, v16 quad_perm:[1,0,3,2] row_mask:0xf bank_mask:0xf")
    e("s_lshl_b32 s%d, s%d, 9\ns_lshl_b32 s%d, s%d, 6\ns_add_u32 s%d, s%d, s%d" % (sT0, sBJ, sT1, sS, sT0, sT0, sT1))
    e("v_cvt_pk_bf16_f32 v18, v16, v18")
    e("s_lshl_b32 s%d, s%d, 4\ns_add_u32 s%d, s%d, s%d\ns_add_u32 s%d, s%d, s%d\ns_add_u32 s%d, s%d, 0x%x" % (sT1, sT, sT0, sT0, sT1, sT0, sT0, sITB, sT0, sT0, HM))
    e("v_min_u32 v18, -2, v18")
    g.exec_set(0x55)
    lstore(g, ["buffer_store_dword v18, v%d, s[%d:%d], s%d offen" % (vQO, dW, dW + 3, sT0)])
    g.exec_all()
    g.lab(ng)
    g.stamp(8, 13)
    last = g.new("last")
    e("s_cmp_lg_u32 s%d, 0\ns_cbranch_scc1 %s" % (sIT, last))
    gather(X5, "x5")
    e("ds_write_b32 v%d, v22" % vXAD)
    e("s_add_u32 s%d, s%d, 1" % (sSEQ, sSEQ))
    flag_set(g, F_XB, "s%d" % sSEQ, vFL, 21)
    g.stamp(9)
    e("s_mov_b32 s%d, 1\ns_add_u32 s%d, s%d, 0x%x" % (sIT, sITB, sITB, ITS))
    e("s_branch L_W_loop")
    g.lab(last)
    e("s_add_u32 s%d, s%d, s%d\ns_cmp_lg_u32 s%d, 0\ns_cbranch_scc1 L_fin" % (sT0, sJ, sS, sT0))
    gather(X5, "x5f")
    g.stamp(14)
    e("s_lshl_b32 s%d, s%d, 10" % (sT0, sB))
    srd(g, dO, pOUT, sT0, 1024)
    e("v_subrev_u32 v20, 0x%x, v%d" % (XB, vXAD))
    e("buffer_store_dword v22, v20, s[%d:%d], 0 offen" % (dO, dO + 3))
    e("s_cmp_lg_u32 s%d, 0\ns_cbranch_scc1 L_fin" % sT)
    e("s_lshl_b32 s%d, s%d, 7" % (sT0, sB))
    e("v_mov_b32 v16, s%d\nv_mov_b32 v18, 0\ns_mov_b64 exec, 1" % sTAG)
    e("buffer_store_dword v16, v18, s[%d:%d], s%d offen" % (dW, dW + 3, sT0))
    e("s_branch L_fin")


def A_path(g):
    e = g.e; o = g.o
    vFL, vFB, vH = 3, 4, 5
    K0 = 64
    if o.prio: e("s_setprio 1")
    NT = " nt" if o.nt else ""
    e("s_lshl_b32 s%d, s%d, 21\ns_lshl_b32 s%d, s%d, 16\ns_add_u32 s%d, s%d, s%d\ns_add_u32 s%d, s%d, 0x%x" % (sT0, sBJ, sT1, sS, sT0, sT0, sT1, sT0, sT0, 6144 * 256))
    srd(g, dA, pK, sT0, 65536)
    srd(g, dB, pV, sT0, 65536)
    e("v_and_b32 v6, 7, v0\nv_lshlrev_b32 v6, 8, v6")
    e("v_bfe_u32 v7, v0, 3, 1\nv_lshl_add_u32 v7, v7, 2, v2\nv_lshl_add_u32 v6, v7, 4, v6")
    e("s_lshl_b32 s%d, s%d, 14" % (sT2, sT))
    for tt in range(4):
        e("s_add_u32 s%d, s%d, %d\ns_and_b32 s%d, s%d, 3\ns_lshl_b32 s%d, s%d, 12\ns_add_u32 s%d, s%d, s%d" % (sT0, sROT, tt, sT0, sT0, sT0, sT0, sT0, sT0, sT2))
        for i2 in range(2):
            for ab in range(2):
                r = K0 + 16 * tt + 8 * i2 + 4 * ab
                e("buffer_load_dwordx4 v[%d:%d], v6, s[%d:%d], s%d offen offset:%d%s" % (r, r + 3, dA, dA + 3, sT0, 128 * i2 + 2048 * ab, NT))
    e("v_lshrrev_b32 v7, 1, v1\nv_xor_b32 v7, v7, v2\nv_lshlrev_b32 v7, 5, v7")
    e("v_and_b32 v8, 1, v0\nv_lshl_add_u32 v7, v8, 4, v7\nv_lshl_add_u32 v7, v2, 8, v7\nv_xor_b32 v8, 0x80, v7")
    e("s_lshl_b32 s%d, s%d, 2" % (sT3, sROT))
    for n in range(16):
        e("s_add_u32 s%d, s%d, %d\ns_and_b32 s%d, s%d, 15\ns_lshl_b32 s%d, s%d, 10\ns_add_u32 s%d, s%d, s%d" % (sM1, sT3, n, sM1, sM1, sM1, sM1, sM1, sM1, sT2))
        e("s_add_u32 s%d, s%d, 0x%x" % (sM0, sM1, R2))
        e("s_mov_b32 m0, s%d" % sM0)
        e("s_nop 0")
        e("buffer_load_dwordx4 v%d, s[%d:%d], s%d offen%s lds" % (7 if ((n >> 1) & 1) == 0 else 8, dB, dB + 3, sM1, NT))
    g.stamp(1)
    e("s_lshl_b32 s%d, s%d, 2\ns_add_u32 s%d, s%d, 0x%x" % (sT0, sT, sT0, sT0, FLG))
    e("v_mov_b32 v%d, s%d\nv_mov_b32 v%d, 0x%x\nv_and_b32 v%d, 3, v0" % (vFL, sT0, vFB, FLG, vH))
    e("s_waitcnt vmcnt(16)")
    g.stamp(2)
    pairs = []
    for tt in range(4):
        for i2 in range(2):
            for dw in range(4):
                pairs.append((K0 + 16 * tt + 8 * i2 + dw, K0 + 16 * tt + 8 * i2 + 4 + dw))
    for p0 in range(0, len(pairs), 4):
        grp = pairs[p0:p0 + 4]
        for n, (x1, x2) in enumerate(grp): e("v_mov_b32 v%d, v%d" % (16 + n, x1))
        for n, (x1, x2) in enumerate(grp): e("v_mov_b32_dpp v%d, v%d row_ror:8 row_mask:0xf bank_mask:0xc" % (x1, x2))
        for n, (x1, x2) in enumerate(grp): e("v_mov_b32_dpp v%d, v%d row_ror:8 row_mask:0xf bank_mask:0x3" % (x2, 16 + n))
    top = g.new("qb"); done = g.new("qbok")
    e("s_mov_b32 s%d, 0" % sCNT)
    g.lab(top)
    e("ds_read_b32 v16, v%d offset:%d" % (vFB, F_QB))
    e("s_waitcnt lgkmcnt(0)")
    e("v_cmp_lt_u32 vcc, 0, v16")
    e("s_cbranch_vccnz %s" % done)
    bound(g, top)
    g.lab(done)
    e("v_readfirstlane_b32 s%d, v16" % sT0)
    e("v_lshlrev_b32 v6, 8, v%d\nv_lshl_add_u32 v6, v2, 4, v6" % vH)
    e("v_add_u32 v7, 0x%x, v6" % QB)
    e("s_lshr_b32 s%d, s%d, 1" % (sMODE, sT0))
    for i in range(4): e("ds_read_b128 v[%d:%d], v7 offset:%d" % (16 + 4 * i, 19 + 4 * i, 64 * i))
    e("s_waitcnt lgkmcnt(0)")
    e("s_branch L_A_qk")
    g.lab("L_A_loop")
    e("v_lshlrev_b32 v6, 8, v%d\nv_lshl_add_u32 v6, v2, 4, v6" % vH)
    e("s_lshl_b32 s%d, s%d, 10\ns_add_u32 s%d, s%d, s%d" % (sT0, sBJ, sT0, sT0, sITB))
    poll(g, ["buffer_load_dwordx4 v[%d:%d], v6, s[%d:%d], s%d offen offset:%d sc1" % (16 + 4 * i, 19 + 4 * i, dW, dW + 3, sT0, QM + 64 * i) for i in range(4)], list(range(16, 32)), 8, "q")
    g.lab("L_A_qk")
    g.stamp(3, 9)
    for i in range(4):
        for tt in range(4):
            r = K0 + 16 * tt + 4 * i
            e("v_mfma_f32_16x16x32_bf16 v[%d:%d], v[%d:%d], v[%d:%d], %s" % (32 + 4 * tt, 35 + 4 * tt, r, r + 3, 16 + 4 * i, 19 + 4 * i, "0" if i == 0 else "v[%d:%d]" % (32 + 4 * tt, 35 + 4 * tt)))
    CS = f2u(LOG2E * 128 ** -0.5)
    e("s_mov_b32 s%d, 0x%x" % (sC0, CS))
    e("v_lshlrev_b32 v6, 3, v2\ns_lshl_b32 s%d, s%d, 7\nv_add_u32 v6, s%d, v6" % (sT0, sT, sT0))
    e("v_lshlrev_b32 v7, 6, v%d\nv_lshlrev_b32 v8, 9, v%d\nv_add_u32 v8, 0x%x, v8" % (vH, vH, PBUF))
    g.nop(3)
    maxtree(g, list(range(32, 48)), 48, "v_max3_f32", "v_max_f32")
    e("v_mov_b32 v49, v48\ns_nop 1\nv_permlane32_swap_b32 v49, v48\nv_max_f32 v48, v48, v49")
    e("v_mov_b32 v49, v48\ns_nop 1\nv_permlane16_swap_b32 v49, v48\nv_max_f32 v48, v48, v49")
    e("v_mul_f32 v48, s%d, v48" % sC0)
    for r in range(32, 48): e("v_fma_f32 v%d, v%d, s%d, -v48" % (r, r, sC0))
    for r in range(32, 48): e("v_exp_f32 v%d, v%d" % (r, r))
    e("s_nop 0")
    for tt in range(4):
        e("v_cvt_pk_bf16_f32 v%d, v%d, v%d\nv_cvt_pk_bf16_f32 v%d, v%d, v%d" % (16 + 2 * tt, 32 + 4 * tt, 33 + 4 * tt, 17 + 2 * tt, 34 + 4 * tt, 35 + 4 * tt))
    e("s_mov_b32 exec_lo, 0x000f000f\ns_mov_b32 exec_hi, 0x000f000f")
    for tt in range(4):
        e("s_add_u32 s%d, s%d, %d\ns_and_b32 s%d, s%d, 3\ns_lshl_b32 s%d, s%d, 5" % (sT0, sROT, tt, sT0, sT0, sT0, sT0))
        e("v_add_u32 v9, s%d, v6\nv_xor_b32 v9, v9, v7\nv_add_u32 v9, v9, v8" % sT0)
        e("ds_write_b64 v9, v[%d:%d]" % (16 + 2 * tt, 17 + 2 * tt))
    g.exec_all()
    e("v_add_f32 v50, v32, v33\nv_add_f32 v51, v34, v35")
    for r in range(36, 48, 2): e("v_add_f32 v50, v50, v%d\nv_add_f32 v51, v51, v%d" % (r, r + 1))
    e("v_add_f32 v50, v50, v51")
    e("v_mov_b32 v49, v50\ns_nop 1\nv_permlane32_swap_b32 v49, v50\nv_add_f32 v50, v50, v49")
    e("v_mov_b32 v49, v50\ns_nop 1\nv_permlane16_swap_b32 v49, v50\nv_add_f32 v49, v50, v49")
    e("s_lshl_b32 s%d, s%d, 3\ns_add_u32 s%d, s%d, 0x%x" % (sT0, sT, sT0, sT0, PSTAT))
    e("v_lshlrev_b32 v9, 5, v%d\nv_add_u32 v9, s%d, v9" % (vH, sT0))
    g.exec_set(0xf)
    e("ds_write_b64 v9, v[48:49]")
    g.exec_all()
    a1 = g.new("a1")
    e("s_cmp_lg_u32 s%d, 0\ns_cbranch_scc1 %s" % (sIT, a1))
    e("s_waitcnt vmcnt(0)")
    g.lab(a1)
    g.stamp(4, 10)
    e("s_add_u32 s%d, s%d, 1" % (sT1, sIT))
    flag_set(g, F_P, "s%d" % sT1, vFL, 9)
    flag_wait(g, F_P, "s%d" % sT1, vFB, 16, "p")
    for il in range(4):
        e("v_xor_b32 v9, %d, v%d\nv_lshlrev_b32 v9, 6, v9\nv_lshl_add_u32 v9, v2, 4, v9\nv_add_u32 v9, v9, v8" % (il, vH))
        for ih in range(2):
            i = 4 * ih + il
            e("ds_read_b128 a[%d:%d], v9 offset:%d" % (92 + 4 * i, 95 + 4 * i, 256 * ih))
    e("v_lshlrev_b32 v9, 5, v%d\nv_add_u32 v9, 0x%x, v9" % (vH, PSTAT))
    e("ds_read_b128 v[16:19], v9\nds_read_b128 v[20:23], v9 offset:16")
    a2 = g.new("a2")
    e("s_cmp_lg_u32 s%d, 0\ns_cbranch_scc1 %s" % (sIT, a2))
    e("v_lshrrev_b32 v10, 2, v1\nv_lshl_add_u32 v11, v2, 3, v10\nv_lshlrev_b32 v11, 8, v11")
    e("v_and_b32 v12, 1, v2\nv_lshl_or_b32 v10, v12, 2, v10")
    e("v_lshl_add_u32 v11, v%d, 3, v11\nv_add_u32 v11, 0x%x, v11" % (vH, R2))
    for dt in range(2):
        e("s_lshl_b32 s%d, s%d, 1\ns_add_u32 s%d, s%d, %d" % (sT0, sT, sT0, sT0, dt))
        e("v_xor_b32 v12, s%d, v10\nv_lshl_add_u32 v12, v12, 5, v11" % sT0)
        for i in range(8):
            for u in range(2):
                r = 32 * dt + 4 * i + 2 * u
                e("ds_read_b64_tr_b16 a[%d:%d], v12 offset:%d" % (r, r + 1, i * 8192 + u * 1024))
    e("s_waitcnt lgkmcnt(0)")
    flag_set(g, F_VR, "1", vFL, 9)
    g.lab(a2)
    e("s_waitcnt lgkmcnt(0)")
    g.stamp(5)
    fill = [
        ["v_max3_f32 v24, v16, v18, v20", "v_max_f32 v24, v24, v22"],
        ["v_sub_f32 v16, v16, v24", "v_sub_f32 v18, v18, v24"],
        ["v_sub_f32 v20, v20, v24", "v_sub_f32 v22, v22, v24"],
        ["v_exp_f32 v16, v16", "v_exp_f32 v18, v18"],
        ["v_exp_f32 v20, v20", "v_exp_f32 v22, v22"],
        ["v_mul_f32 v25, v16, v17"],
        ["v_fma_f32 v25, v18, v19, v25"],
        ["v_fma_f32 v25, v20, v21, v25"],
        ["v_fma_f32 v25, v22, v23, v25"],
    ]
    k = 0
    for i in range(8):
        for dt in range(2):
            acc = 32 + 8 * (i >> 1) + 4 * dt
            e("v_mfma_f32_16x16x32_bf16 v[%d:%d], a[%d:%d], a[%d:%d], %s" % (acc, acc + 3, 32 * dt + 4 * i, 32 * dt + 4 * i + 3, 92 + 4 * i, 95 + 4 * i, "0" if (i & 1) == 0 else "v[%d:%d]" % (acc, acc + 3)))
            if k < len(fill):
                for s_ in fill[k]: e(s_)
            k += 1
    e("s_lshl_b32 s%d, s%d, 13\ns_lshl_b32 s%d, s%d, 10\ns_add_u32 s%d, s%d, s%d" % (sT0, sBJ, sT1, sS, sT0, sT0, sT1))
    e("s_lshl_b32 s%d, s%d, 6\ns_add_u32 s%d, s%d, s%d\ns_add_u32 s%d, s%d, s%d\ns_add_u32 s%d, s%d, 0x%x" % (sT1, sT, sT0, sT0, sT1, sT0, sT0, sITB, sT0, sT0, OM))
    e("v_lshlrev_b32 v9, 8, v%d\nv_lshl_add_u32 v9, v2, 3, v9" % vH)
    g.nop(4)
    ev = [16, 18, 20, 22]
    for dt in range(2):
        for r in range(4):
            b0 = 32 + 4 * dt + r
            e("v_mul_f32 v%d, v%d, v16" % (b0, b0))
        for a_ in range(1, 4):
            for r in range(4):
                b0 = 32 + 4 * dt + r
                e("v_fma_f32 v%d, v%d, v%d, v%d" % (b0, b0 + 8 * a_, ev[a_], b0))
    for dt in range(2):
        b0 = 32 + 4 * dt
        e("v_cvt_pk_bf16_f32 v%d, v%d, v%d\nv_cvt_pk_bf16_f32 v%d, v%d, v%d" % (26 + 2 * dt, b0, b0 + 1, 27 + 2 * dt, b0 + 2, b0 + 3))
    for r in range(26, 30): e("v_min_u32 v%d, -2, v%d" % (r, r))
    e("v_min_u32 v24, -2, v24\nv_min_u32 v25, -2, v25")
    e("s_mov_b32 exec_lo, 0x000f000f\ns_mov_b32 exec_hi, 0x000f000f")
    lstore(g, ["buffer_store_dwordx2 v[26:27], v9, s[%d:%d], s%d offen" % (dW, dW + 3, sT0),
               "buffer_store_dwordx2 v[28:29], v9, s[%d:%d], s%d offen offset:32" % (dW, dW + 3, sT0)])
    g.exec_all()
    ns = g.new("nostat")
    e("s_cmp_lg_u32 s%d, 0\ns_cbranch_scc1 %s" % (sT, ns))
    e("s_lshl_b32 s%d, s%d, 8\ns_lshl_b32 s%d, s%d, 2\ns_add_u32 s%d, s%d, s%d\ns_add_u32 s%d, s%d, s%d\ns_add_u32 s%d, s%d, 0x%x" % (sT0, sBJ, sT1, sS, sT0, sT0, sT1, sT0, sT0, sITB, sT0, sT0, OS))
    e("v_lshlrev_b32 v9, 6, v%d" % vH)
    g.exec_set(0xf)
    lstore(g, ["buffer_store_dword v24, v9, s[%d:%d], s%d offen" % (dW, dW + 3, sT0),
               "buffer_store_dword v25, v9, s[%d:%d], s%d offen offset:32" % (dW, dW + 3, sT0)])
    g.exec_all()
    g.lab(ns)
    g.stamp(6, 11)
    a3 = g.new("a3"); a4 = g.new("a4")
    e("s_cmp_lg_u32 s%d, 0\ns_cbranch_scc1 %s" % (sIT, a3))
    flag_wait(g, F_VR, "1", vFB, 16, "vr")
    e("s_cmp_eq_u32 s%d, 7\ns_cbranch_scc1 %s" % (sS, a4))
    e("s_mul_i32 s%d, s%d, 448\ns_lshl_b32 s%d, s%d, 6\ns_add_u32 s%d, s%d, s%d" % (sT0, sJ, sT1, sS, sT0, sT0, sT1))
    srd(g, dB, pWG, sT0, 511 * 3584 + 64)
    srd(g, dC, pWU, sT0, 511 * 3584 + 64)
    e("v_lshrrev_b32 v9, 2, v0\nv_mul_u32_u24 v9, 0xe00, v9")
    e("v_lshrrev_b32 v10, 5, v0\nv_xor_b32 v10, v10, v%d\nv_lshl_add_u32 v11, v10, 4, v9" % vH)
    e("v_xor_b32 v10, 2, v10\nv_lshl_add_u32 v12, v10, 4, v9")
    e("s_mul_i32 s%d, s%d, 0x%x\ns_lshl_b32 s%d, s%d, 13\ns_add_u32 s%d, s%d, 0x%x" % (sM1, sT, 128 * 3584, sM0, sT, sM0, sM0, R2))
    for n in range(8):
        e("s_mov_b32 m0, s%d" % sM0)
        e("s_add_u32 s%d, s%d, 0x8000" % (sT0, sM0))
        e("buffer_load_dwordx4 v11, s[%d:%d], s%d offen%s lds" % (dB, dB + 3, sM1, " nt" if o.ntw else ""))
        e("s_mov_b32 m0, s%d" % sT0)
        e("s_add_u32 s%d, s%d, 1024" % (sM0, sM0))
        e("buffer_load_dwordx4 v12, s[%d:%d], s%d offen%s lds" % (dC, dC + 3, sM1, " nt" if o.ntw else ""))
        e("s_add_u32 s%d, s%d, 0x%x" % (sM1, sM1, 16 * 3584))
    g.lab(a4)
    e("s_mul_i32 s%d, s%d, 0x%x\ns_lshl_b32 s%d, s%d, 7\ns_add_u32 s%d, s%d, s%d" % (sT0, sJ, 224 * 1024, sT1, sS, sT0, sT0, sT1))
    srd(g, dA, pWD, sT0, 223 * 1024 + 128)
    e("v_lshrrev_b32 v9, 3, v0\nv_and_b32 v10, 7, v0")
    e("v_and_b32 v11, 1, v2\nv_lshlrev_b32 v11, 1, v11\nv_xor_b32 v10, v10, v11\nv_lshlrev_b32 v10, 4, v10")
    e("v_lshl_add_u32 v11, v9, 10, v10")
    e("s_and_b32 s%d, s%d, 1\ns_lshl_b32 s%d, s%d, 6" % (sT0, sT, sT0, sT0))
    e("v_xor_b32 v11, s%d, v11\nv_xor_b32 v12, 64, v11" % sT0)
    e("s_mul_i32 s%d, s%d, 0x%x\ns_mul_i32 s%d, s%d, 0x%x\ns_add_u32 s%d, s%d, 0x%x" % (sM1, sT, 56 * 1024, sM0, sT, 56 * 128, sM0, sM0, R3))
    for n in range(7):
        e("s_mov_b32 m0, s%d" % sM0)
        e("s_add_u32 s%d, s%d, 1024" % (sM0, sM0))
        e("buffer_load_dwordx4 v%d, s[%d:%d], s%d offen%s lds" % (11 if n % 2 == 0 else 12, dA, dA + 3, sM1, " nt" if o.ntw else ""))
        e("s_add_u32 s%d, s%d, 0x2000" % (sM1, sM1))
    e("s_waitcnt vmcnt(7)")
    flag_set(g, F_GU, "1", vFL, 9)
    e("s_waitcnt vmcnt(0)")
    flag_set(g, F_DN, "1", vFL, 9)
    flag_wait(g, F_DN, "1", vFB, 16, "dn")
    e("v_lshrrev_b32 v9, 2, v1\nv_lshl_add_u32 v10, v2, 3, v9\nv_lshlrev_b32 v10, 7, v10")
    e("v_lshrrev_b32 v9, 1, v9\nv_and_b32 v11, 1, v2\nv_lshl_or_b32 v9, v11, 1, v9")
    e("v_xor_b32 v9, s%d, v9\nv_lshl_add_u32 v10, v9, 5, v10" % sT)
    e("v_and_b32 v9, 1, v%d\nv_lshl_add_u32 v10, v9, 3, v10\nv_lshrrev_b32 v9, 1, v%d\nv_lshl_add_u32 v10, v9, 4, v10\nv_add_u32 v10, 0x%x, v10" % (vH, vH, R3))
    for i in range(7):
        for u in range(2):
            r = 64 + 4 * i + 2 * u
            e("ds_read_b64_tr_b16 a[%d:%d], v10 offset:%d" % (r, r + 1, i * 4096 + u * 512))
    e("s_waitcnt lgkmcnt(0)")
    g.lab(a3)
    g.stamp(7)
    e("v_lshlrev_b32 v9, 4, v2")
    e("s_lshl_b32 s%d, s%d, 9\ns_add_u32 s%d, s%d, s%d\ns_add_u32 s%d, s%d, 0x%x" % (sT0, sBJ, sT0, sT0, sITB, sT0, sT0, HM))
    poll(g, ["buffer_load_dwordx4 v[%d:%d], v9, s[%d:%d], s%d offen offset:%d sc1" % (32 + 4 * i, 35 + 4 * i, dW, dW + 3, sT0, 64 * i) for i in range(7)], list(range(32, 60)), 8, "h")
    g.stamp(8, 12)
    for i in range(7):
        e("v_mfma_f32_16x16x32_bf16 v[16:19], v[%d:%d], a[%d:%d], %s" % (32 + 4 * i, 35 + 4 * i, 64 + 4 * i, 67 + 4 * i, "0" if i == 0 else "v[16:19]"))
    e("s_lshl_b32 s%d, s%d, 13\ns_lshl_b32 s%d, s%d, 10\ns_add_u32 s%d, s%d, s%d" % (sT0, sB, sT1, sJ, sT0, sT0, sT1))
    e("s_lshl_b32 s%d, s%d, 7\ns_add_u32 s%d, s%d, s%d\ns_lshl_b32 s%d, s%d, 5\ns_add_u32 s%d, s%d, s%d" % (sT1, sS, sT0, sT0, sT1, sT1, sT, sT0, sT0, sT1))
    e("s_add_u32 s%d, s%d, s%d\ns_add_u32 s%d, s%d, 0x%x" % (sT0, sT0, sITB, sT0, sT0, X5))
    e("v_lshlrev_b32 v9, 1, v0")
    g.nop(2)
    e("v_mov_b32_dpp v18, v16 quad_perm:[1,0,3,2] row_mask:0xf bank_mask:0xf")
    e("s_nop 0")
    e("v_cvt_pk_bf16_f32 v18, v16, v18\nv_min_u32 v18, -2, v18")
    g.exec_set(0x5555)
    e("buffer_store_dword v18, v9, s[%d:%d], s%d offen sc1" % (dW, dW + 3, sT0))
    g.exec_all()
    g.stamp(13, 14)
    e("s_cmp_lg_u32 s%d, 0\ns_cbranch_scc1 L_fin" % sIT)
    e("s_mov_b32 s%d, 1\ns_add_u32 s%d, s%d, 0x%x" % (sIT, sITB, sITB, ITS))
    e("s_branch L_A_loop")


HEADER = open("interleave_layers__sliding_block_cached__glu_gated_glu__decode.s.ref").read().split("\n")


def wrap(body):
    hdr = [l for l in HEADER if l.startswith(";") and "@launch" not in l and "Override launch" not in l and "grid=ceil" not in l]
    out = "\n".join(hdr) + "\n; @launch grid=(256,1,1) block=(512,1,1) lds=%d\n" % LDS_TOTAL
    out += '.amdgcn_target "amdgcn-amd-amdhsa--gfx950"\n.text\n.globl %s\n.p2align 8\n.type %s,@function\n%s:\n' % (KN, KN, KN)
    out += body
    out += '''.section .rodata,"a"
.p2align 6
.amdhsa_kernel %s
  .amdhsa_next_free_vgpr 256
  .amdhsa_next_free_sgpr 102
  .amdhsa_accum_offset 128
  .amdhsa_group_segment_fixed_size 0
  .amdhsa_kernarg_size 96
  .amdhsa_user_sgpr_count 2
  .amdhsa_user_sgpr_kernarg_segment_ptr 1
  .amdhsa_system_sgpr_workgroup_id_x 1
  .amdhsa_float_denorm_mode_32 3
.end_amdhsa_kernel
''' % KN
    return out


if __name__ == "__main__":
    ap = argparse.ArgumentParser()
    ap.add_argument("-o", dest="out", default="out.s")
    ap.add_argument("--diag", action="store_true")
    ap.add_argument("--nt", type=int, default=1)
    ap.add_argument("--ntw", type=int, default=1)
    ap.add_argument("--prio", type=int, default=1)
    ap.add_argument("--force_sc1", type=int, default=0)
    o = ap.parse_args()
    g = build(o)
    open(o.out, "w").write(wrap(g.text()))
```

```python
import argparse

KN = "interleave_layers__sliding_block_cached__glu_gated_glu__decode_kernel"

R1 = 0
R2 = 65536
R3 = 131072
PBUF = R3
PSTAT = R3 + 2048
QB = R3 + 4096
XB = 159744
ONES = XB + 1024 + 64
RED = ONES + 1024
FLG = RED + 1024
LDS_TOTAL = 163840
F_WQ, F_WQR, F_XB, F_QB, F_P, F_VR, F_RED, F_GU, F_DN, F_QP, F_OP, F_X3P, F_HP, F_X5P, F_D, F_VI = [16 * i for i in range(16)]
DBUF = FLG + 256
assert DBUF + 128 <= LDS_TOTAL
assert FLG + 256 <= LDS_TOTAL, FLG
FLAGS = 0x1000
IT0 = 0x10000
ITS = 0x80000
QM, X3, X5, HM, OS, OM = 0x0, 0x8000, 0x10000, 0x18000, 0x1C000, 0x20000
WS_USED = IT0 + 2 * ITS
DIAG = 0x200000
POLL_LIMIT = 400000

pX, pK, pV, pWQ, pWO, pBX, pWG, pWU, pWD, pOUT, pDBG, pWS = 4, 6, 8, 10, 12, 14, 16, 18, 20, 22, 24, 26
sWAVE, sJ, sS, sB, sT, sXCC, sTAG, sIT = 28, 29, 30, 31, 32, 33, 34, 35
dA, dB, dC, dW, dO = 36, 40, 44, 48, 52
sCNT, sMODE, sT0, sT1, sT2, sT3, sITB, sBJ = 56, 57, 58, 59, 60, 61, 62, 63
sSEQ, sROT, sM0, sM1, sC0, sC1 = 96, 97, 98, 99, 100, 101
LOG2E = 1.4426950408889634


def f2u(x):
    import struct
    return struct.unpack("<I", struct.pack("<f", x))[0]


class Gen:
    def __init__(s, o):
        s.L = []; s.o = o; s.uid = 0
    def e(s, t):
        for l in t.strip("\n").split("\n"):
            l = l.strip()
            if l: s.L.append(l if l.endswith(":") else "    " + l)
    def lab(s, n): s.L.append(n + ":")
    def new(s, p):
        s.uid += 1
        return "L%s_%d" % (p, s.uid)
    def c(s, t): s.L.append("    ; " + t)
    def nop(s, n):
        while n > 0:
            k = min(n, 16); s.e("s_nop %d" % (k - 1)); n -= k
    def stb(s, n):
        if s.o.diag == 2: s.e("s_memrealtime s[%d:%d]" % (64 + 2 * n, 65 + 2 * n))
    def stamp(s, n0, n1=None):
        if not s.o.diag: return
        if s.o.diag == 2 and n0 not in (0, 15): return
        if n1 is None:
            s.e("s_memrealtime s[%d:%d]" % (64 + 2 * n0, 65 + 2 * n0))
        else:
            a = s.new("st"); b = s.new("st")
            s.e("s_cmp_eq_u32 s%d, 0\ns_cbranch_scc0 %s" % (sIT, a))
            s.e("s_memrealtime s[%d:%d]\ns_branch %s" % (64 + 2 * n0, 65 + 2 * n0, b))
            s.lab(a)
            s.e("s_memrealtime s[%d:%d]" % (64 + 2 * n1, 65 + 2 * n1))
            s.lab(b)
    def text(s): return "\n".join(s.L) + "\n"
    def exec_set(s, lo, hi=0):
        if hi == 0: s.e("s_mov_b64 exec, 0x%x" % lo)
        else: s.e("s_mov_b32 exec_lo, 0x%x\ns_mov_b32 exec_hi, 0x%x" % (lo, hi))
    def exec_all(s): s.e("s_mov_b64 exec, -1")


def srd(g, d, p, off_s, size):
    if off_s is None:
        g.e("s_mov_b32 s%d, s%d\ns_mov_b32 s%d, s%d" % (d, p, d + 1, p + 1))
    else:
        g.e("s_add_u32 s%d, s%d, s%d\ns_addc_u32 s%d, s%d, 0" % (d, p, off_s, d + 1, p + 1))
    g.e("s_mov_b32 s%d, 0x%x\ns_mov_b32 s%d, 0x20000" % (d + 2, size, d + 3))


def bound(g, top):
    g.e("s_add_u32 s%d, s%d, 1\ns_cmp_lt_u32 s%d, 0x%x\ns_cbranch_scc1 %s\ns_branch L_abort" % (sCNT, sCNT, sCNT, POLL_LIMIT, top))


def maxtree(g, regs, tmp, op3="v_max3_u32", op2="v_max_u32"):
    r = list(regs)
    if len(r) == 2:
        g.e("%s v%d, v%d, v%d" % (op2, tmp, r[0], r[1])); return
    g.e("%s v%d, v%d, v%d, v%d" % (op3, tmp, r[0], r[1], r[2])); r = r[3:]
    while r:
        if len(r) == 1:
            g.e("%s v%d, v%d, v%d" % (op2, tmp, tmp, r[0])); r = []
        else:
            g.e("%s v%d, v%d, v%d, v%d" % (op3, tmp, tmp, r[0], r[1])); r = r[2:]


def poll(g, loads, regs, tmp, name, between=None):
    top = g.new("poll_" + name); done = g.new("ok_" + name)
    g.e("s_mov_b32 s%d, 0" % sCNT)
    g.lab(top)
    for l in loads: g.e(l)
    g.e("s_waitcnt vmcnt(0)")
    maxtree(g, regs, tmp)
    g.e("v_cmp_eq_u32 vcc, -1, v%d" % tmp)
    g.e("s_cbranch_vccz %s" % done)
    bound(g, top)
    g.lab(done)


def lstore(g, ins):
    a = g.new("st_sc1"); b = g.new("st_done")
    g.e("s_cmp_eq_u32 s%d, 0\ns_cbranch_scc1 %s" % (sMODE, a))
    for i in ins: g.e(i)
    g.e("s_branch %s" % b)
    g.lab(a)
    for i in ins: g.e(i + " sc1")
    g.lab(b)


def flag_set(g, grp, val, vFL, vtmp):
    g.e("v_mov_b32 v%d, %s" % (vtmp, val))
    g.e("s_mov_b64 exec, 1")
    g.e("ds_write_b32 v%d, v%d offset:%d" % (vFL, vtmp, grp))
    g.e("s_mov_b64 exec, -1")


def flag_wait(g, grp, val, vFB, vt, name):
    top = g.new("fw_" + name); done = g.new("fd_" + name)
    g.e("s_mov_b32 s%d, 0" % sCNT)
    g.lab(top)
    g.e("ds_read_b128 v[%d:%d], v%d offset:%d" % (vt, vt + 3, vFB, grp))
    g.e("s_waitcnt lgkmcnt(0)")
    g.e("v_min3_u32 v%d, v%d, v%d, v%d" % (vt, vt, vt + 1, vt + 2))
    g.e("v_min_u32 v%d, v%d, v%d" % (vt, vt, vt + 3))
    g.e("v_cmp_le_u32 vcc, %s, v%d" % (val, vt))
    g.e("s_cbranch_vccnz %s" % done)
    bound(g, top)
    g.lab(done)


def flag_wait1(g, grp, val, vFB, vt, name):
    top = g.new("fw_" + name); done = g.new("fd_" + name)
    g.e("s_mov_b32 s%d, 0" % sCNT)
    g.lab(top)
    g.e("ds_read_b32 v%d, v%d offset:%d" % (vt, vFB, grp))
    g.e("s_waitcnt lgkmcnt(0)")
    g.e("v_cmp_le_u32 vcc, %s, v%d" % (val, vt))
    g.e("s_cbranch_vccnz %s" % done)
    bound(g, top)
    g.lab(done)


def dma_group(g, srd_q, vregs, n, soff_fn, m0_fn, nt):
    for i in range(n):
        soff_fn(i); m0_fn(i)
        g.e("s_mov_b32 m0, s%d" % sM0)
        g.e("s_nop 0")
        g.e("buffer_load_dwordx4 v%d, s[%d:%d], s%d offen%s lds" % (vregs(i), srd_q, srd_q + 3, sM1, " nt" if nt else ""))


def build(o):
    g = Gen(o); e = g.e
    e("s_cmp_ge_u32 s2, 256\ns_cbranch_scc1 L_end")
    g.stamp(0)
    e("s_load_dwordx16 s[4:19], s[0:1], 0\ns_load_dwordx8 s[20:27], s[0:1], 64")
    e("v_lshlrev_b32 v3, 2, v0\nv_and_b32 v3, 0xfc, v3\nv_add_u32 v3, 0x%x, v3\nv_mov_b32 v4, 0" % FLG)
    e("ds_write_b32 v3, v4")
    e("v_lshrrev_b32 v1, 6, v0\nv_and_b32 v0, 63, v0")
    e("s_and_b32 s%d, s2, 7" % sJ)
    e("v_readfirstlane_b32 s%d, v1" % sWAVE)
    if o.map == 0:
        e("s_lshr_b32 s%d, s2, 3\ns_and_b32 s%d, s%d, 3\ns_lshr_b32 s%d, s%d, 2" % (sS, sB, sS, sS, sS))
    else:
        e("s_lshr_b32 s%d, s2, 3\ns_lshr_b32 s%d, s%d, 3\ns_and_b32 s%d, s%d, 7" % (sS, sB, sS, sS, sS))
    e("s_getreg_b32 s%d, hwreg(HW_REG_XCC_ID, 0, 4)" % sXCC)
    e("s_and_b32 s%d, s%d, 3" % (sT, sWAVE))
    e("s_lshl_b32 s%d, s%d, 3\ns_add_u32 s%d, s%d, s%d" % (sBJ, sB, sBJ, sBJ, sJ))
    e("s_mov_b32 s%d, 0\ns_mov_b32 s%d, 0\ns_mov_b32 s%d, 0x%x\ns_mov_b32 s%d, 1" % (sIT, sMODE, sITB, IT0, sSEQ))
    e("s_add_u32 s%d, s%d, s%d\ns_and_b32 s%d, s%d, 3" % (sROT, sB, sJ, sROT, sROT))
    if o.rot == 0: e("s_mov_b32 s%d, 0" % sROT)
    if o.rot == 2: e("s_lshr_b32 s%d, s2, 3\ns_add_u32 s%d, s%d, s%d\ns_and_b32 s%d, s%d, 3" % (sROT, sROT, sROT, sS, sROT, sROT))
    e("s_lshl_b32 s%d, s%d, 7" % (sT0, sB))
    e("v_and_b32 v1, 15, v0\nv_lshrrev_b32 v2, 4, v0")
    e("s_waitcnt lgkmcnt(0)")
    e("s_load_dword s%d, s[%d:%d], s%d" % (sTAG, pWS, pWS + 1, sT0))
    srd(g, dW, pWS, None, WS_USED if not o.diag else DIAG + 256 * 8 * 128)
    if o.pref:
        npf = g.new("nopf")
        e("s_cmp_lg_u32 s%d, %d\ns_cbranch_scc1 %s" % (sWAVE, 0, npf))
        e("s_getpc_b64 s[%d:%d]" % (sM0, sM1))
        g.lab("L_pc")
        e("s_sub_u32 s%d, s%d, L_pc-%s\ns_subb_u32 s%d, s%d, 0" % (sM0, sM0, KN, sM1, sM1))
        e("v_lshlrev_b32 v3, 7, v0")
        for k in range(2):
            e("v_cmp_gt_u32 vcc, L_end-%s, v3" % KN)
            e("s_and_saveexec_b64 s[%d:%d], vcc" % (sT0, sT1))
            e("s_cbranch_execz L_pf%d" % k)
            e("global_load_dword v%d, v3, s[%d:%d]" % (60 + k, sM0, sM1))
            g.lab("L_pf%d" % k)
            e("s_mov_b64 exec, s[%d:%d]" % (sT0, sT1))
            e("v_add_u32 v3, 0x2000, v3")
        g.lab(npf)
    e("s_barrier")
    e("s_cmp_ge_u32 s%d, 4\ns_cbranch_scc1 L_W" % sWAVE)
    A_path(g)
    g.lab("L_W")
    W_path(g)
    g.lab("L_abort")
    if o.diag:
        srd(g, dO, pDBG, None, 256)
        e("s_mov_b64 exec, 1\nv_mov_b32 v1, 0xdead\nv_mov_b32 v2, 0\nbuffer_store_dword v1, v2, s[%d:%d], 0 offen" % (dO, dO + 3))
    g.lab("L_fin")
    if o.diag:
        g.stamp(15)
        e("s_waitcnt vmcnt(0) lgkmcnt(0)")
        e("s_mov_b64 exec, 1")
        e("s_lshl_b32 s%d, s2, 3\ns_add_u32 s%d, s%d, s%d\ns_lshl_b32 s%d, s%d, 7\ns_add_u32 s%d, s%d, 0x%x" % (sT0, sT0, sT0, sWAVE, sT0, sT0, sT0, sT0, DIAG))
        e("v_mov_b32 v3, 0")
        for n in range(16):
            e("v_mov_b32 v4, s%d\nv_mov_b32 v5, s%d" % (64 + 2 * n, 65 + 2 * n))
            e("buffer_store_dwordx2 v[4:5], v3, s[%d:%d], s%d offen offset:%d" % (dW, dW + 3, sT0, 8 * n))
            e("s_nop 1")
    g.lab("L_end")
    e("s_endpgm")
    return g


def W_path(g):
    e = g.e; o = g.o
    vXAD, vX0, vX1, vFL, vFB, vXA, vGO, vQO = 3, 4, 5, 6, 7, 8, 9, 10
    vTRB, vTRF = 11, 12
    vQ2 = 15
    vT = 13
    XOP = 32
    GU = 64
    if o.prio: e("s_setprio 3")
    e("v_mov_b32 v16, -1\nv_mov_b32 v17, -1\nv_mov_b32 v18, -1\nv_mov_b32 v19, -1")
    c01 = g.new("clr01"); c3 = g.new("clr3"); cd = g.new("clrd")
    e("s_cmp_ge_u32 s%d, 2\ns_cbranch_scc1 %s" % (sT, c01))
    e("s_mul_i32 s%d, s%d, 0x%x\ns_lshl_b32 s%d, s%d, 13\ns_add_u32 s%d, s%d, s%d" % (sT0, sT, ITS, sT1, sBJ, sT0, sT0, sT1))
    e("s_lshl_b32 s%d, s%d, 10\ns_add_u32 s%d, s%d, s%d\ns_add_u32 s%d, s%d, 0x%x" % (sT1, sS, sT0, sT0, sT1, sT0, sT0, IT0 + OM))
    e("v_lshlrev_b32 v%d, 4, v0" % vT)
    e("buffer_store_dwordx4 v[16:19], v%d, s[%d:%d], s%d offen sc1" % (vT, dW, dW + 3, sT0))
    e("s_branch %s" % cd)
    g.lab(c01)
    e("v_bfe_u32 v%d, v0, 3, 1\nv_mul_u32_u24 v%d, 0x%x, v%d" % (vT, vT, ITS, vT))
    e("v_and_b32 v%d, 7, v0\nv_lshl_add_u32 v%d, v%d, 4, v%d" % (vT + 1, vT + 1, vT + 1, vT))
    e("s_cmp_eq_u32 s%d, 3\ns_cbranch_scc1 %s" % (sT, c3))
    e("v_and_b32 v%d, 7, v0\nv_lshl_add_u32 v%d, v%d, 6, v%d" % (vT + 2, vT + 2, vT + 2, vT))
    e("s_and_b32 s%d, s%d, 1\ns_lshl_b32 s%d, s%d, 9\ns_lshr_b32 s%d, s%d, 1\ns_lshl_b32 s%d, s%d, 4\ns_add_u32 s%d, s%d, s%d" % (sT0, sS, sT0, sT0, sT1, sS, sT1, sT1, sT0, sT0, sT1))
    e("s_lshl_b32 s%d, s%d, 10\ns_add_u32 s%d, s%d, s%d\ns_add_u32 s%d, s%d, 0x%x" % (sT1, sBJ, sT0, sT0, sT1, sT0, sT0, IT0 + QM))
    g.exec_set(0xffff)
    e("buffer_store_dwordx4 v[16:19], v%d, s[%d:%d], s%d offen sc1" % (vT + 2, dW, dW + 3, sT0))
    e("s_lshl_b32 s%d, s%d, 9\ns_lshl_b32 s%d, s%d, 6\ns_add_u32 s%d, s%d, s%d\ns_add_u32 s%d, s%d, 0x%x" % (sT0, sBJ, sT1, sS, sT0, sT0, sT1, sT0, sT0, IT0 + HM))
    g.exec_set(0x0f0f)
    e("buffer_store_dwordx4 v[16:19], v%d, s[%d:%d], s%d offen sc1" % (vT + 1, dW, dW + 3, sT0))
    g.exec_all()
    e("s_branch %s" % cd)
    g.lab(c3)
    e("s_lshl_b32 s%d, s%d, 13\ns_lshl_b32 s%d, s%d, 10\ns_add_u32 s%d, s%d, s%d" % (sT0, sB, sT1, sJ, sT0, sT0, sT1))
    e("s_lshl_b32 s%d, s%d, 7\ns_add_u32 s%d, s%d, s%d\ns_add_u32 s%d, s%d, 0x%x" % (sT1, sS, sT0, sT0, sT1, sT0, sT0, IT0 + X3))
    g.exec_set(0xffff)
    e("buffer_store_dwordx4 v[16:19], v%d, s[%d:%d], s%d offen sc1" % (vT + 1, dW, dW + 3, sT0))
    e("s_add_u32 s%d, s%d, 0x%x" % (sT0, sT0, X5 - X3))
    e("buffer_store_dwordx4 v[16:19], v%d, s[%d:%d], s%d offen sc1" % (vT + 1, dW, dW + 3, sT0))
    e("s_lshl_b32 s%d, s%d, 8\ns_lshl_b32 s%d, s%d, 5\ns_add_u32 s%d, s%d, s%d\ns_add_u32 s%d, s%d, 0x%x" % (sT0, sBJ, sT1, sS, sT0, sT0, sT1, sT0, sT0, IT0 + OS))
    g.exec_set(0x0303)
    e("buffer_store_dwordx4 v[16:19], v%d, s[%d:%d], s%d offen sc1" % (vT + 1, dW, dW + 3, sT0))
    g.exec_all()
    g.lab(cd)
    e("s_lshl_b32 s%d, s%d, 10" % (sT0, sB))
    srd(g, dO, pX, sT0, 1024)
    e("v_lshlrev_b32 v%d, 4, v1\nv_lshl_add_u32 v%d, v2, 2, v%d" % (vXAD, vXAD, vXAD))
    e("s_lshl_b32 s%d, s%d, 8" % (sT0, sT))
    e("buffer_load_dword v%d, v%d, s[%d:%d], s%d offen" % (20, vXAD, dO, dO + 3, sT0))
    e("s_lshl_b32 s%d, s%d, 10\ns_lshl_b32 s%d, s%d, 7\ns_add_u32 s%d, s%d, s%d" % (sT0, sJ, sT1, sS, sT0, sT0, sT1))
    srd(g, dA, pWQ, sT0, 511 * 8192 + 128)
    vROW, vCH, vE, vO_ = 21, 22, 23, 24
    e("v_lshrrev_b32 v%d, 3, v0\nv_and_b32 v%d, 7, v0" % (vROW, vCH))
    e("v_and_b32 v%d, 1, v2\nv_lshlrev_b32 v%d, 1, v%d" % (vT, vT, vT))
    e("v_xor_b32 v%d, v%d, v%d\nv_lshlrev_b32 v%d, 4, v%d" % (vCH, vCH, vT, vCH, vCH))
    e("v_lshl_add_u32 v%d, v%d, 13, v%d\nv_xor_b32 v%d, 64, v%d" % (vE, vROW, vCH, vO_, vE))
    e("s_lshl_b32 s%d, s%d, 20\ns_lshl_b32 s%d, s%d, 14" % (sM1, sT, sM0, sT))
    if o.fakew:
        e("s_lshl_b32 s%d, s%d, 3\ns_add_u32 s%d, s%d, s%d\ns_lshl_b32 s%d, s%d, 16" % (sT0, sJ, sT0, sT0, sS, sT0, sT0))
        srd(g, dA, pWQ, sT0, 65536)
        e("v_lshlrev_b32 v%d, 4, v0\nv_mov_b32 v%d, v%d" % (vE, vO_, vE))
        e("s_lshl_b32 s%d, s%d, 14" % (sM1, sT))
    if o.wqrot:
        if o.wqrot == 3: e("s_lshl_b32 s%d, s%d, 2" % (sT2, sB))
        else: e("s_add_u32 s%d, s%d, s%d\ns_lshl_b32 s%d, s%d, 1" % (sT2, sS, sJ if o.wqrot == 1 else sT, sT2, sT2))
        for n in range(o.wqn):
            e("s_add_u32 s%d, s%d, %d\ns_and_b32 s%d, s%d, 15" % (sT3, sT2, n, sT3, sT3))
            e("s_lshl_b32 s%d, s%d, 4\ns_add_u32 s%d, s%d, s%d" % (sM1, sT, sM1, sM1, sT3))
            e("s_lshl_b32 s%d, s%d, 10" % (sM0, sM1))
            e("s_mov_b32 m0, s%d" % sM0)
            e("s_lshl_b32 s%d, s%d, 16" % (sM1, sM1))
            e("buffer_load_dwordx4 v%d, s[%d:%d], s%d offen%s lds" % (vE if n % 2 == 0 else vO_, dA, dA + 3, sM1, " nt" if o.ntw else ""))
    else:
      for n in range(o.wqn):
        e("s_mov_b32 m0, s%d" % sM0)
        e("s_add_u32 s%d, s%d, 1024" % (sM0, sM0))
        e("buffer_load_dwordx4 v%d, s[%d:%d], s%d offen%s lds" % (vE if n % 2 == 0 else vO_, dA, dA + 3, sM1, " nt" if o.ntw else ""))
        e("s_add_u32 s%d, s%d, 0x%x" % (sM1, sM1, 0x400 if o.fakew else 0x10000))
    e("s_lshl_b32 s%d, s%d, 2\ns_add_u32 s%d, s%d, 0x%x" % (sT0, sT, sT0, sT0, FLG))
    e("v_mov_b32 v%d, s%d\nv_mov_b32 v%d, 0x%x" % (vFL, sT0, vFB, FLG))
    e("v_lshlrev_b32 v%d, 1, v0" % vQO)
    e("v_lshlrev_b32 v%d, 4, v1\nv_lshl_add_u32 v%d, v2, 10, v%d" % (vGO, vGO, vGO))
    e("v_lshrrev_b32 v%d, 2, v1\nv_and_b32 v%d, 3, v0" % (vT, vT + 1))
    e("v_lshl_add_u32 v%d, v2, 3, v%d\nv_lshlrev_b32 v%d, 7, v%d" % (vTRB, vT, vTRB, vTRB))
    e("v_lshrrev_b32 v%d, 1, v%d\nv_and_b32 v%d, 1, v2\nv_lshl_or_b32 v%d, v%d, 1, v%d" % (vTRF, vT, vT + 2, vTRF, vT + 2, vTRF))
    e("v_and_b32 v%d, 1, v%d\nv_lshl_add_u32 v%d, v%d, 3, v%d" % (vT + 2, vT + 1, vTRB, vT + 2, vTRB))
    e("v_lshrrev_b32 v%d, 1, v%d\nv_lshl_add_u32 v%d, v%d, 4, v%d" % (vT + 2, vT + 1, vTRB, vT + 2, vTRB))
    e("v_cmp_eq_u32 vcc, 1, v1\nv_mov_b32 v%d, 0x%x\nv_mov_b32 v%d, 0x%x" % (vT, XB, vT + 1, ONES))
    e("v_cndmask_b32 v%d, v%d, v%d, vcc\nv_lshl_add_u32 v%d, v2, 4, v%d" % (vT, vT, vT + 1, vXA, vT))
    e("s_waitcnt vmcnt(%d)" % o.wqn)
    e("v_lshlrev_b32 v%d, 16, v20\nv_and_b32 v%d, 0xffff0000, v20" % (vX0, vX1))
    e("s_lshl_b32 s%d, s%d, 8\ns_add_u32 s%d, s%d, 0x%x" % (sT0, sT, sT0, sT0, XB))
    e("v_add_u32 v%d, s%d, v%d" % (vXAD, sT0, vXAD))
    e("ds_write_b32 v%d, v20" % vXAD)
    e("v_mov_b32 v%d, 0x3f803f80" % vT)
    e("ds_write_b32 v%d, v%d offset:%d" % (vXAD, vT, ONES - XB))
    flag_set(g, F_XB, "1", vFL, vT + 1)
    e("s_waitcnt lgkmcnt(0)")
    e("s_add_u32 s%d, s%d, 1" % (sTAG, sTAG))
    nf = g.new("noflag")
    e("s_cmp_lg_u32 s%d, 0\ns_cbranch_scc1 %s" % (sT, nf))
    flag_wait(g, F_XB, "1", vFB, 16, "clr")
    e("s_lshl_b32 s%d, s%d, 6\ns_lshl_b32 s%d, s%d, 3\ns_add_u32 s%d, s%d, s%d\ns_add_u32 s%d, s%d, s%d" % (sT0, sB, sT1, sJ, sT0, sT0, sT1, sT0, sT0, sS))
    e("s_lshl_b32 s%d, s%d, 7\ns_add_u32 s%d, s%d, 0x%x" % (sT0, sT0, sT0, sT0, FLAGS))
    e("v_mov_b32 v16, s%d\nv_mov_b32 v17, s%d\nv_mov_b32 v18, 0" % (sTAG, sXCC))
    e("s_mov_b64 exec, 1")
    e("buffer_store_dwordx2 v[16:17], v18, s[%d:%d], s%d offen sc1" % (dW, dW + 3, sT0))
    g.exec_all()
    e("s_waitcnt vmcnt(1)")
    sk = g.new("sk")
    e("s_branch %s" % sk)
    g.lab(nf)
    e("s_waitcnt vmcnt(0)")
    g.lab(sk)
    g.stamp(1); g.stb(1)
    flag_set(g, F_WQ, "1", vFL, vT + 1)
    if o.stop == "stream":
        e("s_branch L_fin")
    flag_wait(g, F_WQ, "1", vFB, 16, "wq")
    e("v_xor_b32 v%d, s%d, v%d\nv_lshl_add_u32 v%d, v%d, 5, v%d" % (vT, sT, vTRF, vT, vT, vTRB))
    for i in range(16):
        for u in range(2):
            e("ds_read_b64_tr_b16 a[%d:%d], v%d offset:%d" % (4 * i + 2 * u, 4 * i + 2 * u + 1, vT, R1 + i * 4096 + u * 512))
    e("s_waitcnt lgkmcnt(0)")
    flag_set(g, F_WQR, "1", vFL, vT + 1)
    e("v_lshrrev_b32 v%d, 3, v1\nv_lshlrev_b32 v%d, 6, v%d\nv_and_b32 v%d, 7, v0\nv_lshl_add_u32 v%d, v%d, 1, v%d" % (vQ2, vQ2, vQ2, vT, vQ2, vT, vQ2))

    def gemv(wreg, name):
        e("v_lshlrev_b32 v%d, 4, v0\nv_add_u32 v%d, 0x%x, v%d" % (20, 20, XB, 20))
        e("ds_read_b128 v[24:27], v20")
        for i in range(8):
            e("ds_read_b128 v[%d:%d], v%d offset:%d" % (XOP + 4 * i, XOP + 4 * i + 3, vXA, 64 * i))
        e("s_mov_b32 s%d, 0x3f803f80" % sC0)
        e("s_waitcnt lgkmcnt(8)")
        fill = []
        fill.append("v_dot2_f32_bf16 v28, v24, s%d, 0" % sC0)
        fill.append("v_dot2_f32_bf16 v29, v24, v24, 0")
        for r in (25, 26, 27):
            fill.append("v_dot2_f32_bf16 v28, v%d, s%d, v28" % (r, sC0))
            fill.append("v_dot2_f32_bf16 v29, v%d, v%d, v29" % (r, r))
        steps = [fill[0:4], fill[4:8]]
        dpp = ["row_shr:1 row_mask:0xf bank_mask:0xf bound_ctrl:0", "row_shr:2 row_mask:0xf bank_mask:0xf bound_ctrl:0",
               "row_shr:4 row_mask:0xf bank_mask:0xf bound_ctrl:0", "row_shr:8 row_mask:0xf bank_mask:0xf bound_ctrl:0",
               "row_bcast:15 row_mask:0xa bank_mask:0xf", "row_bcast:31 row_mask:0xc bank_mask:0xf"]
        for d in dpp:
            steps.append(["v_add_f32_dpp v28, v28, v28 " + d, "v_add_f32_dpp v29, v29, v29 " + d])
        steps.append(["v_readlane_b32 s%d, v28, 63" % sT2, "v_readlane_b32 s%d, v29, 63" % sT3])
        steps.append(["v_mul_f32 v30, s%d, v21" % sT2, "v_mul_f32 v31, s%d, v21" % sT3])
        steps.append(["v_fma_f32 v31, -v30, v30, v31", "v_add_f32 v31, 0x3727c5ac, v31"])
        steps.append(["v_rsq_f32 v31, v31"])
        e("v_mov_b32 v21, 0x3b000000")
        for i in range(16):
            n = min(i + 7, 15) - i
            e("s_waitcnt lgkmcnt(%d)" % n)
            e("v_mfma_f32_16x16x32_bf16 v[16:19], v[%d:%d], %s, %s" % (XOP + 4 * (i % 8), XOP + 4 * (i % 8) + 3, wreg(i), "0" if i == 0 else "v[16:19]"))
            if i + 8 < 16:
                e("ds_read_b128 v[%d:%d], v%d offset:%d" % (XOP + 4 * (i % 8), XOP + 4 * (i % 8) + 3, vXA, 64 * (i + 8)))
            if i < len(steps):
                for s_ in steps[i]: e(s_)
        g.nop(8)
        e("v_fma_f32 v16, -v30, v17, v16")
        e("v_mul_f32 v16, v16, v31")

    g.lab("L_W_loop")
    flag_wait(g, F_XB, "s%d" % sSEQ, vFB, 16, "xbq")
    gemv(lambda i: "a[%d:%d]" % (4 * i, 4 * i + 3), "q")
    g.nop(2)
    e("v_mov_b32_dpp v18, v16 quad_perm:[1,0,3,2] row_mask:0xf bank_mask:0xf")
    e("s_and_b32 s%d, s%d, 1\ns_lshl_b32 s%d, s%d, 9\ns_lshr_b32 s%d, s%d, 1\ns_lshl_b32 s%d, s%d, 4\ns_add_u32 s%d, s%d, s%d" % (sT0, sS, sT0, sT0, sT1, sS, sT1, sT1, sT0, sT0, sT1))
    e("v_cvt_pk_bf16_f32 v18, v16, v18")
    e("s_lshl_b32 s%d, s%d, 10\ns_add_u32 s%d, s%d, s%d\ns_lshl_b32 s%d, s%d, 7\ns_add_u32 s%d, s%d, s%d\ns_add_u32 s%d, s%d, s%d" % (sT1, sBJ, sT0, sT0, sT1, sT1, sT, sT0, sT0, sT1, sT0, sT0, sITB))
    e("v_min_u32 v18, -2, v18")
    g.exec_set(0x5555)
    lstore(g, ["buffer_store_dword v18, v%d, s[%d:%d], s%d offen offset:%d" % (vQ2, dW, dW + 3, sT0, QM)])
    g.exec_all()
    e("s_add_u32 s%d, s%d, 1" % (sT0, sIT))
    flag_set(g, F_QP, "s%d" % sT0, vFL, 21)
    g.stamp(2, 10)
    if o.diag == 2:
        sk = g.new("sb"); e("s_cmp_lg_u32 s%d, 0\ns_cbranch_scc1 %s" % (sIT, sk)); g.stb(2); g.lab(sk)
    w1 = g.new("w1")
    e("s_cmp_lg_u32 s%d, 0\ns_cbranch_scc1 %s" % (sIT, w1))
    nq = g.new("noq")
    e("s_cmp_lg_u32 s%d, 0\ns_cbranch_scc1 %s" % (sT, nq))
    top = g.new("rdy"); done = g.new("rdyok")
    e("v_lshlrev_b32 v20, 7, v0")
    e("s_lshl_b32 s%d, s%d, 13\ns_add_u32 s%d, s%d, 0x%x" % (sT0, sB, sT0, sT0, FLAGS))
    e("s_mov_b32 s%d, 0" % sCNT)
    g.lab(top)
    e("buffer_load_dwordx2 v[16:17], v20, s[%d:%d], s%d offen sc1" % (dW, dW + 3, sT0))
    e("s_waitcnt vmcnt(0)")
    e("v_cmp_ne_u32 vcc, s%d, v16" % sTAG)
    e("s_cbranch_vccz %s" % done)
    bound(g, top)
    g.lab(done)
    e("v_cmp_eq_u32 vcc, s%d, v17" % sXCC)
    e("s_lshl_b32 s%d, s%d, 3" % (sT1, sJ))
    g.nop(2)
    e("s_lshr_b64 s[%d:%d], vcc, s%d" % (sM0, sM1, sT1))
    e("s_and_b32 s%d, s%d, 0xff\ns_cmp_eq_u32 s%d, 0xff\ns_cselect_b32 s%d, 1, 0" % (sM0, sM0, sM0, sMODE))
    if o.force_sc1: e("s_mov_b32 s%d, 0" % sMODE)
    e("v_lshlrev_b32 v20, 4, v0")
    e("s_lshl_b32 s%d, s%d, 10\ns_add_u32 s%d, s%d, 0x%x" % (sT0, sBJ, sT0, sT0, IT0 + QM))
    poll(g, ["buffer_load_dwordx4 v[16:19], v20, s[%d:%d], s%d offen sc1" % (dW, dW + 3, sT0)], [16, 17, 18, 19], 21, "q0")
    e("v_add_u32 v20, 0x%x, v20" % QB)
    e("ds_write_b128 v20, v[16:19]")
    e("s_lshl_b32 s%d, s%d, 1\ns_add_u32 s%d, s%d, 1" % (sT0, sMODE, sT0, sT0))
    e("v_mov_b32 v21, s%d\nv_mov_b32 v22, 0x%x" % (sT0, FLG + F_QB))
    e("s_mov_b64 exec, 1\nds_write_b32 v22, v21\ns_mov_b64 exec, -1")
    g.lab(nq)
    g.stamp(3)
    if o.prio: e("s_setprio 1")
    flag_wait(g, F_WQR, "1", vFB, 16, "wqr")
    if o.vi: flag_wait(g, F_VI, "1", vFB, 16, "vi")
    g.stb(3)
    e("s_lshl_b32 s%d, s%d, 19\ns_lshl_b32 s%d, s%d, 7\ns_add_u32 s%d, s%d, s%d" % (sT0, sJ, sT1, sS, sT0, sT0, sT1))
    srd(g, dA, pWO, sT0, 511 * 1024 + 128)
    e("v_lshrrev_b32 v21, 3, v0\nv_and_b32 v22, 7, v0")
    e("v_and_b32 v23, 1, v2\nv_lshlrev_b32 v23, 1, v23\nv_xor_b32 v22, v22, v23\nv_lshlrev_b32 v22, 4, v22")
    e("v_lshl_add_u32 v23, v21, 10, v22\nv_xor_b32 v24, 64, v23")
    e("s_add_u32 s%d, s%d, s%d\ns_lshl_b32 s%d, s%d, 1\ns_add_u32 s%d, s%d, s%d\ns_lshl_b32 s%d, s%d, 1" % (sT2, sJ, sT, sT3, sROT, sT2, sT2, sT3, sT2, sT2))
    for n in range(16):
        e("s_add_u32 s%d, s%d, %d\ns_and_b32 s%d, s%d, 15" % (sT3, sT2, n, sT3, sT3))
        e("s_lshl_b32 s%d, s%d, 4\ns_add_u32 s%d, s%d, s%d" % (sM1, sT, sM1, sM1, sT3))
        e("s_lshl_b32 s%d, s%d, 10" % (sM0, sM1))
        e("s_mov_b32 m0, s%d" % sM0)
        e("s_lshl_b32 s%d, s%d, 13" % (sM1, sM1))
        e("buffer_load_dwordx4 v%d, s[%d:%d], s%d offen%s lds" % (23 if n % 2 == 0 else 24, dA, dA + 3, sM1, " nt" if o.ntw else ""))
    g.stb(4)
    if o.prio: e("s_setprio 3")
    e("s_waitcnt vmcnt(0)")
    g.stb(5)
    e("s_lshl_b32 s%d, s%d, 14" % (sT0, sT))
    for tile in range(4):
        e("v_xor_b32 v20, %d, v%d\nv_lshl_add_u32 v20, v20, 5, v%d\nv_add_u32 v20, s%d, v20" % (tile, vTRF, vTRB, sT0))
        for i in range(4):
            for u in range(2):
                r = 64 + 16 * tile + 4 * i + 2 * u
                e("ds_read_b64_tr_b16 a[%d:%d], v20 offset:%d" % (r, r + 1, R1 + i * 4096 + u * 512))
    g.stb(6)
    flag_wait1(g, F_QB, "1", vFB, 16, "qbw")
    e("v_readfirstlane_b32 s%d, v16" % sT0)
    e("s_nop 3\ns_lshr_b32 s%d, s%d, 1" % (sMODE, sT0))
    g.lab(w1)
    e("s_add_u32 s%d, s%d, 1" % (sT0, sIT))
    flag_wait(g, F_OP, "s%d" % sT0, vFB, 16, "op")
    e("v_and_b32 v20, 7, v0\nv_lshlrev_b32 v20, 4, v20\nv_lshl_add_u32 v20, v2, 7, v20")
    e("v_and_b32 v21, 1, v2\nv_lshlrev_b32 v21, 4, v21")
    e("s_lshl_b32 s%d, s%d, 13\ns_lshl_b32 s%d, s%d, 11\ns_add_u32 s%d, s%d, s%d\ns_add_u32 s%d, s%d, s%d\ns_add_u32 s%d, s%d, 0x%x" % (sT0, sBJ, sT1, sT, sT0, sT0, sT1, sT0, sT0, sITB, sT0, sT0, OM))
    e("s_lshl_b32 s%d, s%d, 8\ns_lshl_b32 s%d, s%d, 6\ns_add_u32 s%d, s%d, s%d\ns_add_u32 s%d, s%d, s%d\ns_add_u32 s%d, s%d, 0x%x" % (sT1, sBJ, sT2, sT, sT1, sT1, sT2, sT1, sT1, sITB, sT1, sT1, OS))
    loads = ["buffer_load_dwordx4 v[%d:%d], v20, s[%d:%d], s%d offen offset:%d sc1" % (32 + 4 * i, 35 + 4 * i, dW, dW + 3, sT0, 512 * i) for i in range(4)]
    loads += ["buffer_load_dwordx4 v[48:51], v21, s[%d:%d], s%d offen sc1" % (dW, dW + 3, sT1),
              "buffer_load_dwordx4 v[52:55], v21, s[%d:%d], s%d offen offset:32 sc1" % (dW, dW + 3, sT1)]
    poll(g, loads, list(range(32, 56)), 22, "o")
    g.stamp(5, 11)
    if o.diag == 2:
        sk = g.new("sb"); e("s_cmp_lg_u32 s%d, 0\ns_cbranch_scc1 %s" % (sIT, sk)); g.stb(7); g.lab(sk)
    fill = [
        ["v_max3_f32 v22, v48, v49, v50", "v_max_f32 v22, v22, v51"],
        ["v_mov_b32 v23, v22", "s_nop 1", "v_permlane16_swap_b32 v23, v22"],
        ["v_max_f32 v22, v22, v23"],
        ["v_sub_f32 v48, v48, v22", "v_sub_f32 v49, v49, v22", "v_sub_f32 v50, v50, v22"],
        ["v_sub_f32 v51, v51, v22", "v_exp_f32 v48, v48", "v_exp_f32 v49, v49"],
        ["v_exp_f32 v50, v50", "v_exp_f32 v51, v51"],
        ["v_mul_f32 v23, v48, v52", "v_fma_f32 v23, v49, v53, v23"],
        ["v_fma_f32 v23, v50, v54, v23", "v_fma_f32 v23, v51, v55, v23"],
        ["v_mov_b32 v24, v23", "s_nop 1", "v_permlane16_swap_b32 v24, v23"],
        ["v_add_f32 v23, v23, v24"],
        ["v_rcp_f32 v23, v23", "s_nop 0"],
        ["v_mul_f32 v48, v48, v23", "v_mul_f32 v49, v49, v23"],
        ["v_mul_f32 v50, v50, v23", "v_mul_f32 v51, v51, v23"],
    ]
    k = 0
    for i in range(4):
        for tile in range(4):
            r = 64 + 16 * tile + 4 * i
            acc = {0: 16, 1: 28, 2: 56, 3: 60}[tile]
            e("v_mfma_f32_16x16x32_bf16 v[%d:%d], v[%d:%d], a[%d:%d], %s" % (acc, acc + 3, 32 + 4 * i, 35 + 4 * i, r, r + 3, "0" if i == 0 else "v[%d:%d]" % (acc, acc + 3)))
            if k < len(fill):
                for s_ in fill[k]: e(s_)
            k += 1
    g.nop(8)
    accs = [16, 28, 56, 60]
    for tile in range(4):
        a = accs[tile]
        e("v_mul_f32 v%d, v%d, v48\nv_fma_f32 v%d, v%d, v49, v%d\nv_fma_f32 v%d, v%d, v50, v%d\nv_fma_f32 v%d, v%d, v51, v%d" % (a, a, a, a + 1, a, a, a + 2, a, a, a + 3, a))
    g.nop(1)
    e("v_permlane16_swap_b32 v16, v28\nv_permlane16_swap_b32 v56, v60")
    e("v_add_f32 v16, v16, v28\nv_add_f32 v56, v56, v60")
    e("s_mov_b32 s%d, 0\ns_mov_b32 s%d, -1" % (sM0, sM1))
    e("v_cndmask_b32 v16, v16, v56, s[%d:%d]" % (sM0, sM1))
    e("s_lshl_b32 s%d, s%d, 2\ns_add_u32 s%d, s%d, 0x%x" % (sT0, sT, sT0, sT0, RED))
    e("v_lshlrev_b32 v20, 4, v0\nv_add_u32 v20, s%d, v20" % sT0)
    e("ds_write_b32 v20, v16")
    e("s_add_u32 s%d, s%d, 1" % (sT0, sIT))
    flag_set(g, F_RED, "s%d" % sT0, vFL, 21)
    np_ = g.new("nopub")
    e("s_cmp_lg_u32 s%d, 0\ns_cbranch_scc1 %s" % (sT, np_))
    flag_wait(g, F_RED, "s%d" % sT0, vFB, 16, "red")
    e("v_lshlrev_b32 v20, 5, v0\nv_and_b32 v20, 0x3ff, v20\nv_add_u32 v20, 0x%x, v20" % RED)
    e("ds_read_b128 v[16:19], v20\nds_read_b128 v[24:27], v20 offset:16")
    e("s_lshl_b32 s%d, s%d, 13\ns_lshl_b32 s%d, s%d, 10\ns_add_u32 s%d, s%d, s%d" % (sT0, sB, sT1, sJ, sT0, sT0, sT1))
    e("s_lshl_b32 s%d, s%d, 7\ns_add_u32 s%d, s%d, s%d\ns_add_u32 s%d, s%d, s%d\ns_add_u32 s%d, s%d, 0x%x" % (sT1, sS, sT0, sT0, sT1, sT0, sT0, sITB, sT0, sT0, X3))
    e("v_lshlrev_b32 v21, 2, v0")
    e("s_waitcnt lgkmcnt(0)")
    e("v_add_f32 v16, v16, v17\nv_add_f32 v24, v24, v25\nv_add_f32 v18, v18, v19\nv_add_f32 v26, v26, v27")
    e("v_add_f32 v16, v16, v18\nv_add_f32 v24, v24, v26")
    e("v_cvt_pk_bf16_f32 v16, v16, v24\nv_min_u32 v16, -2, v16")
    e("s_mov_b32 exec_lo, -1\ns_mov_b32 exec_hi, 0")
    e("buffer_store_dword v16, v21, s[%d:%d], s%d offen sc1" % (dW, dW + 3, sT0))
    g.exec_all()
    g.stamp(6, 4)
    if o.diag == 2:
        sk = g.new("sb"); e("s_cmp_lg_u32 s%d, 0\ns_cbranch_scc1 %s" % (sIT, sk)); g.stb(8); g.lab(sk)
    if o.ackx: e("s_waitcnt vmcnt(0)")
    e("s_add_u32 s%d, s%d, 1" % (sT0, sIT))
    flag_set(g, F_X3P, "s%d" % sT0, vFL, 21)
    g.lab(np_)
    e("s_add_u32 s%d, s%d, 1" % (sT0, sIT))
    flag_wait1(g, F_X3P, "s%d" % sT0, vFB, 16, "x3p")

    def gather(region, name):
        e("s_lshl_b32 s%d, s%d, 13\ns_lshl_b32 s%d, s%d, 8\ns_add_u32 s%d, s%d, s%d\ns_add_u32 s%d, s%d, s%d\ns_add_u32 s%d, s%d, 0x%x" % (sT0, sB, sT1, sT, sT0, sT0, sT1, sT0, sT0, sITB, sT0, sT0, region))
        e("s_add_u32 s%d, s%d, 4096" % (sT1, sT0))
        poll(g, ["buffer_load_dwordx4 v[32:35], v%d, s[%d:%d], s%d offen sc1" % (vGO, dW, dW + 3, sT0),
                 "buffer_load_dwordx4 v[36:39], v%d, s[%d:%d], s%d offen sc1" % (vGO, dW, dW + 3, sT1)], list(range(32, 40)), 22, name)
        e("s_mov_b32 s%d, 0x3f80\ns_mov_b32 s%d, 0x3f800000" % (sC0, sC1))
        for k_ in range(4):
            e("v_dot2_f32_bf16 v%d, v%d, s%d, 0\nv_dot2_f32_bf16 v%d, v%d, s%d, 0" % (40 + 2 * k_, 32 + k_, sC0, 41 + 2 * k_, 32 + k_, sC1))
        for k_ in range(4):
            e("v_dot2_f32_bf16 v%d, v%d, s%d, v%d\nv_dot2_f32_bf16 v%d, v%d, s%d, v%d" % (40 + 2 * k_, 36 + k_, sC0, 40 + 2 * k_, 41 + 2 * k_, 36 + k_, sC1, 41 + 2 * k_))
        g.nop(1)
        for i in range(4): e("v_permlane32_swap_b32 v%d, v%d" % (40 + i, 44 + i))
        for i in range(4): e("v_add_f32 v%d, v%d, v%d" % (40 + i, 40 + i, 44 + i))
        g.nop(1)
        e("v_permlane16_swap_b32 v40, v42\nv_permlane16_swap_b32 v41, v43")
        e("v_add_f32 v40, v40, v42\nv_add_f32 v41, v41, v43")
        e("v_cvt_pk_bf16_f32 v22, v40, v41")
        e("v_dot2_f32_bf16 v%d, v22, s%d, v%d\nv_dot2_f32_bf16 v%d, v22, s%d, v%d" % (vX0, sC0, vX0, vX1, sC1, vX1))
        g.nop(3)
        e("v_cvt_pk_bf16_f32 v22, v%d, v%d" % (vX0, vX1))
        e("v_lshlrev_b32 v%d, 16, v22\nv_and_b32 v%d, 0xffff0000, v22" % (vX0, vX1))

    gather(X3, "x3")
    e("ds_write_b32 v%d, v22" % vXAD)
    e("s_add_u32 s%d, s%d, 1" % (sSEQ, sSEQ))
    flag_set(g, F_XB, "s%d" % sSEQ, vFL, 21)
    g.stamp(7, 12)
    if o.diag == 2:
        sk = g.new("sb"); e("s_cmp_lg_u32 s%d, 0\ns_cbranch_scc1 %s" % (sIT, sk)); g.stb(9); g.lab(sk)
    ng = g.new("nog"); w2 = g.new("w2")
    e("s_cmp_eq_u32 s%d, 7\ns_cbranch_scc1 %s" % (sS, ng))
    e("s_cmp_lg_u32 s%d, 0\ns_cbranch_scc1 %s" % (sIT, w2))
    flag_wait(g, F_GU, "1", vFB, 16, "gu")
    g.stb(10)
    e("v_lshrrev_b32 v20, 2, v1\nv_and_b32 v21, 3, v0\nv_lshl_add_u32 v20, v2, 3, v20\nv_lshlrev_b32 v20, 6, v20")
    e("v_lshrrev_b32 v22, 1, v21\nv_lshl_add_u32 v20, v22, 15, v20\nv_lshlrev_b32 v22, 1, v22")
    e("v_and_b32 v23, 1, v2\nv_xor_b32 v22, v22, v23\nv_xor_b32 v22, s%d, v22\nv_lshl_add_u32 v20, v22, 4, v20" % sT)
    e("v_and_b32 v21, 1, v21\nv_lshl_add_u32 v20, v21, 3, v20\nv_add_u32 v20, 0x%x, v20" % R2)
    for i in range(16):
        for u in range(2):
            r = GU + 4 * i + 2 * u
            e("ds_read_b64_tr_b16 v[%d:%d], v20 offset:%d" % (r, r + 1, i * 2048 + u * 256))
    e("s_waitcnt lgkmcnt(0)")
    g.stb(11)
    g.lab(w2)
    flag_wait(g, F_XB, "s%d" % sSEQ, vFB, 16, "xbg")
    gemv(lambda i: "v[%d:%d]" % (GU + 4 * i, GU + 4 * i + 3), "g")
    g.nop(2)
    e("v_mov_b32_dpp v17, v16 row_shl:8 row_mask:0xf bank_mask:0xf")
    e("v_mul_f32 v16, 0x%x, v16" % f2u(-LOG2E))
    e("v_exp_f32 v16, v16\ns_nop 0\nv_add_f32 v16, 1.0, v16\nv_rcp_f32 v16, v16\ns_nop 0\nv_mul_f32 v16, v16, v17")
    g.nop(2)
    e("v_mov_b32_dpp v18, v16 quad_perm:[1,0,3,2] row_mask:0xf bank_mask:0xf")
    e("s_lshl_b32 s%d, s%d, 9\ns_lshl_b32 s%d, s%d, 4\ns_add_u32 s%d, s%d, s%d" % (sT0, sBJ, sT1, sS, sT0, sT0, sT1))
    e("v_cvt_pk_bf16_f32 v18, v16, v18")
    e("s_lshl_b32 s%d, s%d, 7\ns_add_u32 s%d, s%d, s%d\ns_add_u32 s%d, s%d, s%d\ns_add_u32 s%d, s%d, 0x%x" % (sT1, sT, sT0, sT0, sT1, sT0, sT0, sITB, sT0, sT0, HM))
    e("v_min_u32 v18, -2, v18")
    g.exec_set(0x55)
    lstore(g, ["buffer_store_dword v18, v%d, s[%d:%d], s%d offen" % (vQO, dW, dW + 3, sT0)])
    g.exec_all()
    g.lab(ng)
    e("s_add_u32 s%d, s%d, 1" % (sT0, sIT))
    flag_set(g, F_HP, "s%d" % sT0, vFL, 21)
    g.stamp(8, 13)
    if o.diag == 2:
        sk = g.new("sb"); e("s_cmp_lg_u32 s%d, 0\ns_cbranch_scc1 %s" % (sIT, sk)); g.stb(12); g.lab(sk)
    last = g.new("last")
    e("s_cmp_lg_u32 s%d, 0\ns_cbranch_scc1 %s" % (sIT, last))
    flag_wait1(g, F_X5P, "1", vFB, 16, "x5p")
    gather(X5, "x5")
    e("ds_write_b32 v%d, v22" % vXAD)
    e("s_add_u32 s%d, s%d, 1" % (sSEQ, sSEQ))
    flag_set(g, F_XB, "s%d" % sSEQ, vFL, 21)
    g.stamp(9)
    e("s_mov_b32 s%d, 1\ns_add_u32 s%d, s%d, 0x%x" % (sIT, sITB, sITB, ITS))
    e("s_branch L_W_loop")
    g.lab(last)
    e("s_add_u32 s%d, s%d, s%d\ns_cmp_lg_u32 s%d, 0\ns_cbranch_scc1 L_fin" % (sT0, sJ, sS, sT0))
    flag_wait1(g, F_X5P, "2", vFB, 16, "x5pf")
    gather(X5, "x5f")
    g.stamp(14)
    e("s_lshl_b32 s%d, s%d, 10" % (sT0, sB))
    srd(g, dO, pOUT, sT0, 1024)
    e("v_subrev_u32 v20, 0x%x, v%d" % (XB, vXAD))
    e("buffer_store_dword v22, v20, s[%d:%d], 0 offen" % (dO, dO + 3))
    e("s_cmp_lg_u32 s%d, 0\ns_cbranch_scc1 L_fin" % sT)
    e("s_lshl_b32 s%d, s%d, 7" % (sT0, sB))
    e("v_mov_b32 v16, s%d\nv_mov_b32 v18, 0\ns_mov_b64 exec, 1" % sTAG)
    e("buffer_store_dword v16, v18, s[%d:%d], s%d offen" % (dW, dW + 3, sT0))
    e("s_branch L_fin")


def A_path(g):
    e = g.e; o = g.o
    vFL, vFB, vH = 3, 4, 5
    K0 = 64
    if o.prio: e("s_setprio 2")
    NT = " nt" if o.nt else ""
    if o.adelay == 1:
        e("v_mov_b32 v%d, 0x%x" % (vFB, FLG))
        flag_wait(g, F_WQ, "1", vFB, 16, "adel")
    e("s_lshl_b32 s%d, s%d, 21\ns_lshl_b32 s%d, s%d, 16\ns_add_u32 s%d, s%d, s%d\ns_add_u32 s%d, s%d, 0x%x" % (sT0, sBJ, sT1, sS, sT0, sT0, sT1, sT0, sT0, 6144 * 256))
    srd(g, dA, pK, sT0, 65536)
    srd(g, dB, pV, sT0, 65536)
    e("v_and_b32 v6, 7, v0\nv_lshlrev_b32 v6, 8, v6")
    e("v_bfe_u32 v7, v0, 3, 1\nv_lshl_add_u32 v7, v7, 2, v2\nv_lshl_add_u32 v6, v7, 4, v6")
    e("s_lshl_b32 s%d, s%d, 14" % (sT2, sT))
    for tt in range(4):
        e("s_add_u32 s%d, s%d, %d\ns_and_b32 s%d, s%d, 3\ns_lshl_b32 s%d, s%d, 12\ns_add_u32 s%d, s%d, s%d" % (sT0, sROT, tt, sT0, sT0, sT0, sT0, sT0, sT0, sT2))
        for i2 in range(2):
            for ab in range(2):
                r = K0 + 16 * tt + 8 * i2 + 4 * ab
                e("buffer_load_dwordx4 v[%d:%d], v6, s[%d:%d], s%d offen offset:%d%s" % (r, r + 3, dA, dA + 3, sT0, 128 * i2 + 2048 * ab, NT))
                if o.win: e("s_waitcnt vmcnt(%d)" % (o.win - 1))
    e("v_lshrrev_b32 v7, 1, v1\nv_xor_b32 v7, v7, v2\nv_lshlrev_b32 v7, 5, v7")
    e("v_and_b32 v8, 1, v0\nv_lshl_add_u32 v7, v8, 4, v7\nv_lshl_add_u32 v7, v2, 8, v7\nv_xor_b32 v8, 0x80, v7")
    e("s_lshl_b32 s%d, s%d, 2" % (sT3, sROT))
    for n in range(16):
        e("s_add_u32 s%d, s%d, %d\ns_and_b32 s%d, s%d, 15\ns_lshl_b32 s%d, s%d, 10\ns_add_u32 s%d, s%d, s%d" % (sM1, sT3, n, sM1, sM1, sM1, sM1, sM1, sM1, sT2))
        e("s_add_u32 s%d, s%d, 0x%x" % (sM0, sM1, R2))
        e("s_mov_b32 m0, s%d" % sM0)
        e("s_nop 0")
        e("buffer_load_dwordx4 v%d, s[%d:%d], s%d offen%s lds" % (7 if ((n >> 1) & 1) == 0 else 8, dB, dB + 3, sM1, NT))
        if o.win and n < 15: e("s_waitcnt vmcnt(%d)" % (o.win - 1))
    g.stamp(1); g.stb(1)
    e("s_lshl_b32 s%d, s%d, 2\ns_add_u32 s%d, s%d, 0x%x" % (sT0, sT, sT0, sT0, FLG))
    e("v_mov_b32 v%d, s%d\nv_mov_b32 v%d, 0x%x\nv_and_b32 v%d, 3, v0" % (vFL, sT0, vFB, FLG, vH))
    flag_set(g, F_VI, "1", vFL, 9)
    e("s_waitcnt vmcnt(16)")
    g.stamp(2)
    if o.stop == "stream":
        e("s_waitcnt vmcnt(0)")
        g.stamp(3)
        e("s_branch L_fin")
    pairs = []
    for tt in range(4):
        for i2 in range(2):
            for dw in range(4):
                pairs.append((K0 + 16 * tt + 8 * i2 + dw, K0 + 16 * tt + 8 * i2 + 4 + dw))
    for p0 in range(0, len(pairs), 4):
        grp = pairs[p0:p0 + 4]
        for n, (x1, x2) in enumerate(grp): e("v_mov_b32 v%d, v%d" % (16 + n, x1))
        for n, (x1, x2) in enumerate(grp): e("v_mov_b32_dpp v%d, v%d row_ror:8 row_mask:0xf bank_mask:0xc" % (x1, x2))
        for n, (x1, x2) in enumerate(grp): e("v_mov_b32_dpp v%d, v%d row_ror:8 row_mask:0xf bank_mask:0x3" % (x2, 16 + n))
    top = g.new("qb"); done = g.new("qbok")
    e("s_mov_b32 s%d, 0" % sCNT)
    g.lab(top)
    e("ds_read_b32 v16, v%d offset:%d" % (vFB, F_QB))
    e("s_waitcnt lgkmcnt(0)")
    e("v_cmp_lt_u32 vcc, 0, v16")
    e("s_cbranch_vccnz %s" % done)
    bound(g, top)
    g.lab(done)
    e("v_readfirstlane_b32 s%d, v16" % sT0)
    e("v_lshlrev_b32 v6, 4, v%d\nv_lshl_add_u32 v6, v2, 6, v6" % vH)
    e("v_add_u32 v7, 0x%x, v6" % QB)
    e("s_lshr_b32 s%d, s%d, 1" % (sMODE, sT0))
    for i in range(4): e("ds_read_b128 v[%d:%d], v7 offset:%d" % (16 + 4 * i, 19 + 4 * i, 256 * i))
    e("s_waitcnt lgkmcnt(0)")
    e("s_branch L_A_qk")
    g.lab("L_A_loop")
    flag_wait(g, F_QP, "2", vFB, 16, "qp")
    e("v_lshlrev_b32 v6, 4, v%d\nv_lshl_add_u32 v6, v2, 6, v6" % vH)
    e("s_lshl_b32 s%d, s%d, 10\ns_add_u32 s%d, s%d, s%d" % (sT0, sBJ, sT0, sT0, sITB))
    poll(g, ["buffer_load_dwordx4 v[%d:%d], v6, s[%d:%d], s%d offen offset:%d sc1" % (16 + 4 * i, 19 + 4 * i, dW, dW + 3, sT0, QM + 256 * i) for i in range(4)], list(range(16, 32)), 8, "q")
    g.lab("L_A_qk")
    g.stamp(3, 9)
    for i in range(4):
        for tt in range(4):
            r = K0 + 16 * tt + 4 * i
            e("v_mfma_f32_16x16x32_bf16 v[%d:%d], v[%d:%d], v[%d:%d], %s" % (32 + 4 * tt, 35 + 4 * tt, r, r + 3, 16 + 4 * i, 19 + 4 * i, "0" if i == 0 else "v[%d:%d]" % (32 + 4 * tt, 35 + 4 * tt)))
    CS = f2u(LOG2E * 128 ** -0.5)
    e("s_mov_b32 s%d, 0x%x" % (sC0, CS))
    e("v_lshlrev_b32 v6, 3, v2\ns_lshl_b32 s%d, s%d, 7\nv_add_u32 v6, s%d, v6" % (sT0, sT, sT0))
    e("v_lshlrev_b32 v7, 6, v%d\nv_lshlrev_b32 v8, 9, v%d\nv_add_u32 v8, 0x%x, v8" % (vH, vH, PBUF))
    g.nop(3)
    maxtree(g, list(range(32, 48)), 48, "v_max3_f32", "v_max_f32")
    e("v_mov_b32 v49, v48\ns_nop 1\nv_permlane32_swap_b32 v49, v48\nv_max_f32 v48, v48, v49")
    e("v_mov_b32 v49, v48\ns_nop 1\nv_permlane16_swap_b32 v49, v48\nv_max_f32 v48, v48, v49")
    e("v_mul_f32 v48, s%d, v48" % sC0)
    for r in range(32, 48): e("v_fma_f32 v%d, v%d, s%d, -v48" % (r, r, sC0))
    for r in range(32, 48): e("v_exp_f32 v%d, v%d" % (r, r))
    e("s_nop 0")
    for tt in range(4):
        e("v_cvt_pk_bf16_f32 v%d, v%d, v%d\nv_cvt_pk_bf16_f32 v%d, v%d, v%d" % (16 + 2 * tt, 32 + 4 * tt, 33 + 4 * tt, 17 + 2 * tt, 34 + 4 * tt, 35 + 4 * tt))
    e("s_mov_b32 exec_lo, 0x000f000f\ns_mov_b32 exec_hi, 0x000f000f")
    for tt in range(4):
        e("s_add_u32 s%d, s%d, %d\ns_and_b32 s%d, s%d, 3\ns_lshl_b32 s%d, s%d, 5" % (sT0, sROT, tt, sT0, sT0, sT0, sT0))
        e("v_add_u32 v9, s%d, v6\nv_xor_b32 v9, v9, v7\nv_add_u32 v9, v9, v8" % sT0)
        e("ds_write_b64 v9, v[%d:%d]" % (16 + 2 * tt, 17 + 2 * tt))
    g.exec_all()
    e("v_add_f32 v50, v32, v33\nv_add_f32 v51, v34, v35")
    for r in range(36, 48, 2): e("v_add_f32 v50, v50, v%d\nv_add_f32 v51, v51, v%d" % (r, r + 1))
    e("v_add_f32 v50, v50, v51")
    e("v_mov_b32 v49, v50\ns_nop 1\nv_permlane32_swap_b32 v49, v50\nv_add_f32 v50, v50, v49")
    e("v_mov_b32 v49, v50\ns_nop 1\nv_permlane16_swap_b32 v49, v50\nv_add_f32 v49, v50, v49")
    e("s_lshl_b32 s%d, s%d, 3\ns_add_u32 s%d, s%d, 0x%x" % (sT0, sT, sT0, sT0, PSTAT))
    e("v_lshlrev_b32 v9, 5, v%d\nv_add_u32 v9, s%d, v9" % (vH, sT0))
    g.exec_set(0xf)
    e("ds_write_b64 v9, v[48:49]")
    g.exec_all()
    a1 = g.new("a1")
    e("s_cmp_lg_u32 s%d, 0\ns_cbranch_scc1 %s" % (sIT, a1))
    e("s_waitcnt vmcnt(0)")
    g.stb(2)
    g.lab(a1)
    g.stamp(4, 10)
    e("s_add_u32 s%d, s%d, 1" % (sT1, sIT))
    flag_set(g, F_P, "s%d" % sT1, vFL, 9)
    flag_wait(g, F_P, "s%d" % sT1, vFB, 16, "p")
    for il in range(4):
        e("v_xor_b32 v9, %d, v%d\nv_lshlrev_b32 v9, 6, v9\nv_lshl_add_u32 v9, v2, 4, v9\nv_add_u32 v9, v9, v8" % (il, vH))
        for ih in range(2):
            i = 4 * ih + il
            e("ds_read_b128 a[%d:%d], v9 offset:%d" % (92 + 4 * i, 95 + 4 * i, 256 * ih))
    e("v_lshlrev_b32 v9, 5, v%d\nv_add_u32 v9, 0x%x, v9" % (vH, PSTAT))
    e("ds_read_b128 v[16:19], v9\nds_read_b128 v[20:23], v9 offset:16")
    a2 = g.new("a2")
    e("s_cmp_lg_u32 s%d, 0\ns_cbranch_scc1 %s" % (sIT, a2))
    e("v_lshrrev_b32 v10, 2, v1\nv_lshl_add_u32 v11, v2, 3, v10\nv_lshlrev_b32 v11, 8, v11")
    e("v_and_b32 v12, 1, v2\nv_lshl_or_b32 v10, v12, 2, v10")
    e("v_lshl_add_u32 v11, v%d, 3, v11\nv_add_u32 v11, 0x%x, v11" % (vH, R2))
    for dt in range(2):
        e("s_lshl_b32 s%d, s%d, 1\ns_add_u32 s%d, s%d, %d" % (sT0, sT, sT0, sT0, dt))
        e("v_xor_b32 v12, s%d, v10\nv_lshl_add_u32 v12, v12, 5, v11" % sT0)
        for i in range(8):
            for u in range(2):
                r = 32 * dt + 4 * i + 2 * u
                e("ds_read_b64_tr_b16 a[%d:%d], v12 offset:%d" % (r, r + 1, i * 8192 + u * 1024))
    e("s_waitcnt lgkmcnt(0)")
    flag_set(g, F_VR, "1", vFL, 9)
    g.lab(a2)
    e("s_waitcnt lgkmcnt(0)")
    g.stamp(5, 7)
    fill = [
        ["v_max3_f32 v24, v16, v18, v20", "v_max_f32 v24, v24, v22"],
        ["v_sub_f32 v16, v16, v24", "v_sub_f32 v18, v18, v24"],
        ["v_sub_f32 v20, v20, v24", "v_sub_f32 v22, v22, v24"],
        ["v_exp_f32 v16, v16", "v_exp_f32 v18, v18"],
        ["v_exp_f32 v20, v20", "v_exp_f32 v22, v22"],
        ["v_mul_f32 v25, v16, v17"],
        ["v_fma_f32 v25, v18, v19, v25"],
        ["v_fma_f32 v25, v20, v21, v25"],
        ["v_fma_f32 v25, v22, v23, v25"],
    ]
    k = 0
    for i in range(8):
        for dt in range(2):
            acc = 32 + 8 * (i >> 1) + 4 * dt
            e("v_mfma_f32_16x16x32_bf16 v[%d:%d], a[%d:%d], a[%d:%d], %s" % (acc, acc + 3, 32 * dt + 4 * i, 32 * dt + 4 * i + 3, 92 + 4 * i, 95 + 4 * i, "0" if (i & 1) == 0 else "v[%d:%d]" % (acc, acc + 3)))
            if k < len(fill):
                for s_ in fill[k]: e(s_)
            k += 1
    e("s_lshl_b32 s%d, s%d, 13\ns_lshl_b32 s%d, s%d, 4\ns_add_u32 s%d, s%d, s%d" % (sT0, sBJ, sT1, sS, sT0, sT0, sT1))
    e("s_lshl_b32 s%d, s%d, 9\ns_add_u32 s%d, s%d, s%d\ns_add_u32 s%d, s%d, s%d\ns_add_u32 s%d, s%d, 0x%x" % (sT1, sT, sT0, sT0, sT1, sT0, sT0, sITB, sT0, sT0, OM))
    e("v_lshlrev_b32 v9, 11, v%d\nv_lshrrev_b32 v10, 1, v2\nv_lshl_add_u32 v9, v10, 7, v9\nv_and_b32 v10, 1, v2\nv_lshl_add_u32 v9, v10, 3, v9" % vH)
    g.nop(2)
    ev = [16, 18, 20, 22]
    for dt in range(2):
        for r in range(4):
            b0 = 32 + 4 * dt + r
            e("v_mul_f32 v%d, v%d, v16" % (b0, b0))
        for a_ in range(1, 4):
            for r in range(4):
                b0 = 32 + 4 * dt + r
                e("v_fma_f32 v%d, v%d, v%d, v%d" % (b0, b0 + 8 * a_, ev[a_], b0))
    for dt in range(2):
        b0 = 32 + 4 * dt
        e("v_cvt_pk_bf16_f32 v%d, v%d, v%d\nv_cvt_pk_bf16_f32 v%d, v%d, v%d" % (26 + 2 * dt, b0, b0 + 1, 27 + 2 * dt, b0 + 2, b0 + 3))
    for r in range(26, 30): e("v_min_u32 v%d, -2, v%d" % (r, r))
    e("v_min_u32 v24, -2, v24\nv_min_u32 v25, -2, v25")
    e("s_mov_b32 exec_lo, 0x000f000f\ns_mov_b32 exec_hi, 0x000f000f")
    lstore(g, ["buffer_store_dwordx2 v[26:27], v9, s[%d:%d], s%d offen" % (dW, dW + 3, sT0),
               "buffer_store_dwordx2 v[28:29], v9, s[%d:%d], s%d offen offset:256" % (dW, dW + 3, sT0)])
    g.exec_all()
    ns = g.new("nostat")
    e("s_cmp_lg_u32 s%d, 0\ns_cbranch_scc1 %s" % (sT, ns))
    e("s_lshl_b32 s%d, s%d, 8\ns_lshl_b32 s%d, s%d, 2\ns_add_u32 s%d, s%d, s%d\ns_add_u32 s%d, s%d, s%d\ns_add_u32 s%d, s%d, 0x%x" % (sT0, sBJ, sT1, sS, sT0, sT0, sT1, sT0, sT0, sITB, sT0, sT0, OS))
    e("v_lshlrev_b32 v9, 6, v%d" % vH)
    g.exec_set(0xf)
    lstore(g, ["buffer_store_dword v24, v9, s[%d:%d], s%d offen" % (dW, dW + 3, sT0),
               "buffer_store_dword v25, v9, s[%d:%d], s%d offen offset:32" % (dW, dW + 3, sT0)])
    g.exec_all()
    g.lab(ns)
    e("s_add_u32 s%d, s%d, 1" % (sT0, sIT))
    flag_set(g, F_OP, "s%d" % sT0, vFL, 9)
    g.stamp(6, 11)
    if o.diag == 2:
        sk = g.new("sb"); e("s_cmp_lg_u32 s%d, 0\ns_cbranch_scc1 %s" % (sIT, sk)); g.stb(3); g.lab(sk)
    a3 = g.new("a3"); a4 = g.new("a4")
    e("s_cmp_lg_u32 s%d, 0\ns_cbranch_scc1 %s" % (sIT, a3))
    flag_wait(g, F_VR, "1", vFB, 16, "vr")
    g.stb(4)
    if o.prio: e("s_setprio 0")
    e("s_cmp_eq_u32 s%d, 7\ns_cbranch_scc1 %s" % (sS, a4))
    e("s_mul_i32 s%d, s%d, 448\ns_lshl_b32 s%d, s%d, 6\ns_add_u32 s%d, s%d, s%d" % (sT0, sJ, sT1, sS, sT0, sT0, sT1))
    srd(g, dB, pWG, sT0, 511 * 3584 + 64)
    srd(g, dC, pWU, sT0, 511 * 3584 + 64)
    e("v_lshrrev_b32 v9, 2, v0\nv_mul_u32_u24 v9, 0xe00, v9")
    e("v_lshrrev_b32 v10, 5, v0\nv_xor_b32 v10, v10, v%d\nv_lshl_add_u32 v11, v10, 4, v9" % vH)
    e("v_xor_b32 v10, 2, v10\nv_lshl_add_u32 v12, v10, 4, v9")
    e("s_lshl_b32 s%d, s%d, 1" % (sT2, sB))
    for n in range(8):
        e("s_add_u32 s%d, s%d, %d\ns_and_b32 s%d, s%d, 7" % (sT3, sT2, n, sT3, sT3))
        e("s_lshl_b32 s%d, s%d, 3\ns_add_u32 s%d, s%d, s%d" % (sM1, sT, sM1, sM1, sT3))
        e("s_lshl_b32 s%d, s%d, 10\ns_add_u32 s%d, s%d, 0x%x" % (sM0, sM1, sM0, sM0, R2))
        e("s_mov_b32 m0, s%d" % sM0)
        e("s_mul_i32 s%d, s%d, 0x%x" % (sM1, sM1, 16 * 3584))
        e("buffer_load_dwordx4 v11, s[%d:%d], s%d offen%s lds" % (dB, dB + 3, sM1, " nt" if o.ntw else ""))
        e("s_add_u32 s%d, s%d, 0x8000" % (sM0, sM0))
        e("s_mov_b32 m0, s%d" % sM0)
        e("s_nop 0")
        e("buffer_load_dwordx4 v12, s[%d:%d], s%d offen%s lds" % (dC, dC + 3, sM1, " nt" if o.ntw else ""))
        if o.win2: e("s_waitcnt vmcnt(%d)" % (o.win2 - 1))
    g.lab(a4)
    e("s_mul_i32 s%d, s%d, 0x%x\ns_lshl_b32 s%d, s%d, 7\ns_add_u32 s%d, s%d, s%d" % (sT0, sJ, 224 * 1024, sT1, sS, sT0, sT0, sT1))
    srd(g, dA, pWD, sT0, 223 * 1024 + 128)
    e("v_lshrrev_b32 v9, 3, v0\nv_and_b32 v10, 7, v0")
    e("v_and_b32 v11, 1, v2\nv_lshlrev_b32 v11, 1, v11\nv_xor_b32 v10, v10, v11\nv_lshlrev_b32 v10, 4, v10")
    e("v_lshl_add_u32 v11, v9, 10, v10")
    e("s_mul_i32 s%d, s%d, 7\ns_lshl_b32 s%d, s%d, 1" % (sT1, sT, sT2, sB))
    for n in range(7):
        e("s_add_u32 s%d, s%d, %d\ns_sub_u32 s%d, s%d, 7\ns_cmp_ge_u32 s%d, 7\ns_cselect_b32 s%d, s%d, s%d" % (sT3, sT2, n, sT0, sT3, sT3, sT3, sT0, sT3))
        e("s_add_u32 s%d, s%d, s%d" % (sT3, sT3, sT1))
        e("s_and_b32 s%d, s%d, 1\ns_lshl_b32 s%d, s%d, 6" % (sT0, sT3, sT0, sT0))
        e("v_xor_b32 v12, s%d, v11" % sT0)
        e("s_lshl_b32 s%d, s%d, 10\ns_add_u32 s%d, s%d, 0x%x" % (sM0, sT3, sM0, sM0, R3))
        e("s_mov_b32 m0, s%d" % sM0)
        e("s_lshl_b32 s%d, s%d, 13" % (sM1, sT3))
        e("buffer_load_dwordx4 v12, s[%d:%d], s%d offen%s lds" % (dA, dA + 3, sM1, " nt" if o.ntw else ""))
    g.stb(5)
    e("s_waitcnt vmcnt(7)")
    g.stb(6)
    flag_set(g, F_GU, "1", vFL, 9)
    e("s_waitcnt vmcnt(0)")
    g.stb(7)
    flag_set(g, F_DN, "1", vFL, 9)
    flag_wait(g, F_DN, "1", vFB, 16, "dn")
    e("v_lshrrev_b32 v9, 2, v1\nv_lshl_add_u32 v10, v2, 3, v9\nv_lshlrev_b32 v10, 7, v10")
    e("v_lshrrev_b32 v9, 1, v9\nv_and_b32 v11, 1, v2\nv_lshl_or_b32 v9, v11, 1, v9")
    e("v_xor_b32 v9, s%d, v9\nv_lshl_add_u32 v10, v9, 5, v10" % sT)
    e("v_and_b32 v9, 1, v%d\nv_lshl_add_u32 v10, v9, 3, v10\nv_lshrrev_b32 v9, 1, v%d\nv_lshl_add_u32 v10, v9, 4, v10\nv_add_u32 v10, 0x%x, v10" % (vH, vH, R3))
    for i in range(7):
        for u in range(2):
            r = 64 + 4 * i + 2 * u
            e("ds_read_b64_tr_b16 a[%d:%d], v10 offset:%d" % (r, r + 1, i * 4096 + u * 512))
    e("s_waitcnt lgkmcnt(0)")
    g.stb(8)
    g.lab(a3)
    e("s_add_u32 s%d, s%d, 1" % (sT0, sIT))
    flag_wait(g, F_HP, "s%d" % sT0, vFB, 16, "hp")
    e("v_lshlrev_b32 v9, 4, v1\nv_lshl_add_u32 v9, v2, 7, v9")
    e("s_lshl_b32 s%d, s%d, 9\ns_add_u32 s%d, s%d, s%d\ns_add_u32 s%d, s%d, 0x%x" % (sT0, sBJ, sT0, sT0, sITB, sT0, sT0, HM))
    e("s_mov_b32 exec_lo, 0x007f007f\ns_mov_b32 exec_hi, 0x007f007f")
    poll(g, ["buffer_load_dwordx4 v[20:23], v9, s[%d:%d], s%d offen sc1" % (dW, dW + 3, sT0)], [20, 21, 22, 23], 8, "h")
    g.exec_all()
    g.stamp(8, 12)
    if o.diag == 2:
        sk = g.new("sb"); e("s_cmp_lg_u32 s%d, 0\ns_cbranch_scc1 %s" % (sIT, sk)); g.stb(9); g.lab(sk)
    for i in range(7):
        e("v_mfma_f32_16x16x32_bf16 v[%d:%d], v[20:23], a[%d:%d], 0" % (32 + 4 * i, 35 + 4 * i, 64 + 4 * i, 67 + 4 * i))
    g.nop(5)
    e("v_add_f32 v16, v32, v37\nv_add_f32 v17, v42, v47")
    g.nop(1)
    e("v_add_f32 v24, v48, v53\nv_add_f32 v16, v16, v17")
    e("v_add_f32 v24, v24, v58")
    e("s_nop 1")
    e("v_permlane16_swap_b32 v24, v25")
    e("v_add_f32 v16, v16, v25")
    e("s_lshl_b32 s%d, s%d, 5\ns_add_u32 s%d, s%d, 0x%x" % (sT0, sT, sT0, sT0, DBUF))
    e("v_lshlrev_b32 v9, 1, v0\nv_add_u32 v9, s%d, v9" % sT0)
    e("v_mov_b32_dpp v18, v16 quad_perm:[1,0,3,2] row_mask:0xf bank_mask:0xf")
    e("s_nop 0")
    e("v_cvt_pk_bf16_f32 v18, v16, v18\nv_min_u32 v18, -2, v18")
    g.exec_set(0x5555)
    e("ds_write_b32 v9, v18")
    g.exec_all()
    e("s_add_u32 s%d, s%d, 1" % (sT2, sIT))
    flag_set(g, F_D, "s%d" % sT2, vFL, 9)
    nd = g.new("nod")
    e("s_cmp_lg_u32 s%d, 0\ns_cbranch_scc1 %s" % (sT, nd))
    flag_wait(g, F_D, "s%d" % sT2, vFB, 16, "d")
    e("v_lshlrev_b32 v9, 2, v0\nv_and_b32 v10, 0x7f, v9\nv_add_u32 v10, 0x%x, v10" % DBUF)
    e("ds_read_b32 v18, v10")
    e("s_lshl_b32 s%d, s%d, 13\ns_lshl_b32 s%d, s%d, 10\ns_add_u32 s%d, s%d, s%d" % (sT0, sB, sT1, sJ, sT0, sT0, sT1))
    e("s_lshl_b32 s%d, s%d, 7\ns_add_u32 s%d, s%d, s%d" % (sT1, sS, sT0, sT0, sT1))
    e("s_add_u32 s%d, s%d, s%d\ns_add_u32 s%d, s%d, 0x%x" % (sT0, sT0, sITB, sT0, sT0, X5))
    e("s_waitcnt lgkmcnt(0)")
    e("s_mov_b32 exec_lo, -1\ns_mov_b32 exec_hi, 0")
    e("buffer_store_dword v18, v9, s[%d:%d], s%d offen sc1" % (dW, dW + 3, sT0))
    g.exec_all()
    g.stamp(13, 14)
    if o.ackx: e("s_waitcnt vmcnt(0)")
    flag_set(g, F_X5P, "s%d" % sT2, vFL, 9)
    g.lab(nd)
    e("s_cmp_lg_u32 s%d, 0\ns_cbranch_scc1 L_fin" % sIT)
    e("s_mov_b32 s%d, 1\ns_add_u32 s%d, s%d, 0x%x" % (sIT, sITB, sITB, ITS))
    e("s_branch L_A_loop")


HEADER = open("interleave_layers__sliding_block_cached__glu_gated_glu__decode.s.ref").read().split("\n")


def wrap(body):
    hdr = [l for l in HEADER if l.startswith(";") and "@launch" not in l and "Override launch" not in l and "grid=ceil" not in l]
    out = "\n".join(hdr) + "\n; @launch grid=(256,1,1) block=(512,1,1) lds=%d\n" % LDS_TOTAL
    out += '.amdgcn_target "amdgcn-amd-amdhsa--gfx950"\n.text\n.globl %s\n.p2align 8\n.type %s,@function\n%s:\n' % (KN, KN, KN)
    out += body
    out += '''.section .rodata,"a"
.p2align 6
.amdhsa_kernel %s
  .amdhsa_next_free_vgpr 256
  .amdhsa_next_free_sgpr 102
  .amdhsa_accum_offset 128
  .amdhsa_group_segment_fixed_size 0
  .amdhsa_kernarg_size 96
  .amdhsa_user_sgpr_count 2
  .amdhsa_user_sgpr_kernarg_segment_ptr 1
  .amdhsa_system_sgpr_workgroup_id_x 1
  .amdhsa_float_denorm_mode_32 3
.end_amdhsa_kernel
''' % KN
    return out


if __name__ == "__main__":
    ap = argparse.ArgumentParser()
    ap.add_argument("-o", dest="out", default="out.s")
    ap.add_argument("--diag", type=int, nargs="?", const=1, default=0)
    ap.add_argument("--nt", type=int, default=1)
    ap.add_argument("--ntw", type=int, default=0)
    ap.add_argument("--prio", type=int, default=1)
    ap.add_argument("--force_sc1", type=int, default=0)
    ap.add_argument("--pref", type=int, default=1)
    ap.add_argument("--stop", default="")
    ap.add_argument("--wqn", type=int, default=16)
    ap.add_argument("--adelay", type=int, default=0)
    ap.add_argument("--rot", type=int, default=1)
    ap.add_argument("--win", type=int, default=4)
    ap.add_argument("--win2", type=int, default=0)
    ap.add_argument("--wqrot", type=int, default=3)
    ap.add_argument("--map", type=int, default=0)
    ap.add_argument("--vi", type=int, default=1)
    ap.add_argument("--fakew", type=int, default=0)
    ap.add_argument("--ackx", type=int, default=1)
    o = ap.parse_args()
    g = build(o)
    open(o.out, "w").write(wrap(g.text()))
```
